```python
import torch

def _softmax(x, axis=-1):
    return torch.softmax(x, dim=axis)
def _gelu(x):
    return torch.nn.functional.gelu(x, approximate="tanh")
def _silu(x):
    return torch.nn.functional.silu(x)
def _sigmoid(x):
    return torch.sigmoid(x)
def _layernorm(x, axis=-1, eps=1e-5):
    m = x.mean(dim=axis, keepdim=True)
    v = x.var(dim=axis, keepdim=True, unbiased=False)
    return (x - m) / torch.sqrt(v + eps)
def _scatter_add(tgt, idx, src, axis=0):
    return tgt.clone().index_add_(axis, idx, src)
def _segment_sum(src, seg, n):
    out = torch.zeros((n,) + src.shape[1:], dtype=src.dtype)
    return out.index_add_(0, seg, src)
def _pad(x, pw):
    flat = tuple(v for pair in reversed(pw) for v in pair)
    return torch.nn.functional.pad(x, flat)

kernel_name = 'interleave_layers__mha_block__mixer_channel_mlp__prompt'

def setup_inputs():

    _w = (lambda a: (lambda t: t.to(torch.bfloat16) if t.is_floating_point() else t)(torch.as_tensor(a)))
    def _A_setup():
        B, S, D, H = 1, 2048, 1024, 32
        return {
            "x": _w((lambda *s: torch.randn(*s, dtype=torch.bfloat16) * 0.05)(B, S, D)),
            "wqkv": _w((lambda *s: torch.randn(*s, dtype=torch.bfloat16) * 0.05)(D, 3 * D)),
            "wo": _w((lambda *s: torch.randn(*s, dtype=torch.bfloat16) * 0.05)(D, D)),
        }
    _A_in = _A_setup()

    def _B_setup():
        B, S, D, F = 1, 2048, 1024, 3584
        return {
            "x": _w((lambda *s: torch.randn(*s, dtype=torch.bfloat16) * 0.05)(B, S, D)),
            "w1": _w((lambda *s: torch.randn(*s, dtype=torch.bfloat16) * 3.2)(D, F) * (D ** -0.5)),
            "b1": _w((lambda *s: torch.randn(*s, dtype=torch.bfloat16) * 0.8)(F)),
            "w2": _w((lambda *s: torch.randn(*s, dtype=torch.bfloat16) * 0.4)(F, D) * (F ** -0.5)),
            "b2": _w((lambda *s: torch.randn(*s, dtype=torch.bfloat16) * 0.4)(D)),
        }
    _B_in = _B_setup()

    return {
        "A_x": _A_in["x"],
        "A_wqkv": _A_in["wqkv"],
        "A_wo": _A_in["wo"],
        "B_x": _B_in["x"],
        "B_w1": _B_in["w1"],
        "B_b1": _B_in["b1"],
        "B_w2": _B_in["w2"],
        "B_b2": _B_in["b2"],
    }

def reference(A_x, A_wqkv, A_wo, B_x, B_w1, B_b1, B_w2, B_b2):
    def _A_ref(x, wqkv, wo):
        B, S, D = x.shape
        H = 32
        Dh = D // H
        qkv = (lambda x, *d: x.permute(*d))((x @ wqkv).reshape(B, S, 3, H, Dh), 2, 0, 3, 1, 4)
        q, k, v = qkv[0], qkv[1], qkv[2]
        scores = torch.einsum("bhqd,bhkd->bhqk", q, k) * (Dh ** -0.5)
        p = _softmax(scores, axis=-1)
        o = torch.einsum("bhqk,bhkd->bhqd", p, v)
        return (lambda x, *d: x.permute(*d))(o, 0, 2, 1, 3).reshape(B, S, D) @ wo

    def _B_ref(x, w1, b1, w2, b2):
        y = _layernorm(x, axis=-1)
        h = _gelu(torch.einsum("bsd,df->bsf", y, w1) + b1)
        return torch.einsum("bsf,fd->bsd", h, w2) + b2

    x = A_x
    x = x + _A_ref(_layernorm(x, axis=-1), A_wqkv, A_wo)
    x = x + _B_ref(_layernorm(x, axis=-1), B_w1, B_b1, B_w2, B_b2)
    x = x + _A_ref(_layernorm(x, axis=-1), A_wqkv, A_wo)
    x = x + _B_ref(_layernorm(x, axis=-1), B_w1, B_b1, B_w2, B_b2)
    return x
```

```python
import math
import sys

NAME = "interleave_layers__mha_block__mixer_channel_mlp__prompt"
S_TOK, D, F, NH = 2048, 1024, 3584, 32
EPS = 1e-5

KA_X, KA_WQKV, KA_WO, KA_BX, KA_W1, KA_B1, KA_W2, KA_B2, KA_OUT, KA_DBG, KA_WS = [8 * i for i in range(11)]

MB = 1 << 20
WS_QF = 0
WS_KF = 4 * MB
WS_VF = 8 * MB
WS_O = 12 * MB
WS_X1 = 16 * MB
WS_H = 20 * MB
WS_ST0 = 36 * MB
WS_ST1 = WS_ST0 + 256 * 1024
WS_CSQ = 37 * MB
WS_CS1 = WS_CSQ + 64 * 1024
WS_END = 38 * MB

SRD3 = 0x00020000


def f32(x):
    import struct
    return "0x%08x" % struct.unpack("<I", struct.pack("<f", x))[0]


class Kern:
    def __init__(self, name):
        self.name = name
        self.lines = []
        self.maxv = 0
        self.uid = 0

    def e(self, s):
        self.lines.append("    " + s)

    def c(self, s):
        self.lines.append("    ; " + s)

    def label(self, l):
        self.lines.append(l + ":")

    def newlabel(self, p):
        self.uid += 1
        return "L_%s_%s%d" % (self.name, p, self.uid)

    def text(self):
        return "\n".join(self.lines) + "\n"


def vr(b, n=1):
    return "v%d" % b if n == 1 else "v[%d:%d]" % (b, b + n - 1)


def sr(b, n=1):
    return "s%d" % b if n == 1 else "s[%d:%d]" % (b, b + n - 1)


def header(name):
    return f""".globl {name}
.p2align 8
.type {name},@function
{name}:
"""


def desc(name, vgpr, sgpr=96):
    vg = (vgpr + 7) // 8 * 8
    return f""".p2align 6
.amdhsa_kernel {name}
  .amdhsa_next_free_vgpr {vg}
  .amdhsa_next_free_sgpr {sgpr}
  .amdhsa_accum_offset {vg}
  .amdhsa_group_segment_fixed_size 0
  .amdhsa_kernarg_size 88
  .amdhsa_user_sgpr_count 2
  .amdhsa_user_sgpr_kernarg_segment_ptr 1
  .amdhsa_system_sgpr_workgroup_id_x 1
  .amdhsa_float_denorm_mode_32 3
.end_amdhsa_kernel
"""


def make_srd(k, dst, ptr, off_sgpr=None, off_imm=0, nrec=0):
    if off_sgpr is None and off_imm == 0:
        k.e(f"s_mov_b32 s{dst}, s{ptr}")
        k.e(f"s_and_b32 s{dst+1}, s{ptr+1}, 0xffff")
    else:
        if off_sgpr is not None:
            k.e(f"s_add_u32 s{dst}, s{ptr}, s{off_sgpr}")
            k.e(f"s_addc_u32 s{dst+1}, s{ptr+1}, 0")
            if off_imm:
                k.e(f"s_add_u32 s{dst}, s{dst}, {off_imm}")
                k.e(f"s_addc_u32 s{dst+1}, s{dst+1}, 0")
        else:
            k.e(f"s_add_u32 s{dst}, s{ptr}, {off_imm}")
            k.e(f"s_addc_u32 s{dst+1}, s{ptr+1}, 0")
        k.e(f"s_and_b32 s{dst+1}, s{dst+1}, 0xffff")
    k.e(f"s_mov_b32 s{dst+2}, {nrec}")
    k.e(f"s_mov_b32 s{dst+3}, {SRD3}")


def gen_gemm(kind, opts=None):
    opts = opts or {}
    cfg = {
        "qkv": dict(K=1024, N=3072, lda=1024, NSEG=3, HALF=False, S=4),
        "wo": dict(K=1024, N=1024, lda=1024, NSEG=1, HALF=False, S=6),
        "w1": dict(K=1024, N=3584, lda=1024, NSEG=3, HALF=True, S=3),
        "w2": dict(K=3584, N=1024, lda=3584, NSEG=1, HALF=False, S=6),
    }[kind]
    cfg.update(opts)
    K, N, lda, NSEG, HALF, S = cfg["K"], cfg["N"], cfg["lda"], cfg["NSEG"], cfg["HALF"], cfg["S"]
    no_compute = cfg.get("no_compute", False)
    BK = 64
    NS = K // BK
    lda2, ldw2 = lda * 2, N * 2
    XB = 16384
    WB = NSEG * 8192 + (4096 if HALF else 0)
    STAGE = XB + WB
    LDS = STAGE * S
    assert LDS <= 163840
    NB = 2 * NSEG + (1 if HALF else 0)
    P = 4 + 2 * NSEG + (1 if HALF else 0)
    name = kind + "_body"
    k = Kern(kind)
    L_end = f"L_{kind}_end"
    L_loader = f"L_{kind}_loader"

    sXP = 4
    sWP = 6
    sWS = 30
    sOP = 32
    sBP = 34
    SRD_A, SRD_W, SRD_O, SRD_R, SRD_T, SRD_B = 8, 12, 16, 20, 24, 36
    sWave, sMT, sNT, sT0, sT1, sRing, sCnt, sKx, sKw, sRx, sRw = range(40, 51)

    k.label(name)
    k.e("s_cmp_ge_u32 s2, 256")
    k.e(f"s_cbranch_scc1 {L_end}")
    wka = {"qkv": KA_WQKV, "wo": KA_WO, "w1": KA_W1, "w2": KA_W2}[kind]
    k.e(f"s_load_dwordx2 s[{sWP}:{sWP+1}], s[0:1], {wka}")
    k.e(f"s_load_dwordx2 s[{sWS}:{sWS+1}], s[0:1], {KA_WS}")
    k.e(f"s_load_dwordx2 s[{sOP}:{sOP+1}], s[0:1], {KA_OUT}")
    k.e(f"s_load_dwordx2 s[{sBP}:{sBP+1}], s[0:1], {KA_B1 if kind == 'w1' else KA_B2}")
    k.e("v_lshrrev_b32 v1, 6, v0")
    k.e("v_and_b32 v0, 63, v0")
    k.e(f"v_readfirstlane_b32 s{sWave}, v1")
    k.e(f"s_and_b32 s{sT0}, s2, 7")
    k.e(f"s_lshr_b32 s{sT1}, s2, 3")
    if NSEG == 3:
        k.e(f"s_and_b32 s{sMT}, s{sT0}, 1")
        k.e(f"s_lshl_b32 s{sMT}, s{sMT}, 3")
        k.e(f"s_and_b32 s{sNT}, s{sT1}, 7")
        k.e(f"s_add_u32 s{sMT}, s{sMT}, s{sNT}")
        k.e(f"s_lshr_b32 s{sNT}, s{sT0}, 1")
        k.e(f"s_lshl_b32 s{sNT}, s{sNT}, 2")
        k.e(f"s_lshr_b32 s{sT1}, s{sT1}, 3")
        k.e(f"s_add_u32 s{sNT}, s{sNT}, s{sT1}")
    else:
        k.e(f"s_and_b32 s{sMT}, s{sT0}, 3")
        k.e(f"s_lshl_b32 s{sMT}, s{sMT}, 2")
        k.e(f"s_and_b32 s{sNT}, s{sT1}, 3")
        k.e(f"s_add_u32 s{sMT}, s{sMT}, s{sNT}")
        k.e(f"s_lshr_b32 s{sNT}, s{sT0}, 2")
        k.e(f"s_lshl_b32 s{sNT}, s{sNT}, 3")
        k.e(f"s_lshr_b32 s{sT1}, s{sT1}, 2")
        k.e(f"s_add_u32 s{sNT}, s{sNT}, s{sT1}")
    k.e("s_waitcnt lgkmcnt(0)")
    k.e(f"s_mul_i32 s{sT0}, s{sMT}, {128 * lda2}")
    if kind == "qkv":
        make_srd(k, SRD_A, sXP, off_sgpr=sT0, nrec=128 * lda2)
    else:
        aoff = {"wo": WS_O, "w1": WS_X1, "w2": WS_H}[kind]
        make_srd(k, SRD_A, sWS, off_sgpr=sT0, off_imm=aoff, nrec=128 * lda2)
    make_srd(k, SRD_W, sWP, nrec=K * N * 2)
    if kind == "qkv":
        make_srd(k, SRD_O, sWS, nrec=12 * MB)
    elif kind == "wo":
        make_srd(k, SRD_O, sWS, off_imm=WS_X1, nrec=4 * MB)
    elif kind == "w1":
        make_srd(k, SRD_O, sWS, off_imm=WS_H, nrec=S_TOK * F * 2)
    else:
        make_srd(k, SRD_O, sOP, nrec=4 * MB)
    if kind == "wo":
        make_srd(k, SRD_R, sXP, nrec=4 * MB)
    elif kind == "w2":
        make_srd(k, SRD_R, sWS, off_imm=WS_X1, nrec=4 * MB)
    make_srd(k, SRD_T, sWS, off_imm=WS_ST0, nrec=WS_END - WS_ST0)
    make_srd(k, SRD_B, sBP, nrec=(F if kind == "w1" else D) * 2)
    k.e(f"s_cmp_ge_u32 s{sWave}, 4")
    k.e(f"s_cbranch_scc1 {L_loader}")

    TBL = 0 if (NS - 1) % S != 0 else STAGE
    T_AB = TBL
    T_CS = TBL + 1024
    T_B1 = TBL + 2048
    T_ST = TBL + 4096

    vC, vG, vT0, vT1, vT2, vT3 = 1, 2, 3, 4, 5, 6
    bX0, bX1, bW0, bW1, bH = 7, 8, 9, 10, 11
    aX0, aX1, aW0, aW1, aH = 12, 13, 14, 15, 16
    ACC = 20
    FR = ACC + 16 * NB
    FSZ = 16 + 4 * NB
    VEND = FR + 2 * FSZ

    def acc(tb, blk):
        return ACC + (tb * NB + blk) * 4

    def fx(st, tb):
        return FR + st * FSZ + tb * 4

    def fw(st, blk):
        return FR + st * FSZ + 16 + blk * 4

    sWM, sWN = 51, 52
    k.c("compute wave")
    k.e(f"s_lshr_b32 s{sWM}, s{sWave}, 1")
    k.e(f"s_and_b32 s{sWN}, s{sWave}, 1")
    k.e(f"v_and_b32 v{vC}, 15, v0")
    k.e(f"v_lshrrev_b32 v{vG}, 4, v0")
    k.e(f"v_lshrrev_b32 v{vT0}, 1, v{vC}")
    k.e(f"v_xor_b32 v{vT0}, v{vT0}, v{vG}")
    k.e(f"v_lshlrev_b32 v{vT0}, 4, v{vT0}")
    k.e(f"v_lshl_add_u32 v{bX0}, v{vC}, 7, v{vT0}")
    k.e(f"s_lshl_b32 s{sT0}, s{sWM}, 13")
    k.e(f"v_add_u32 v{bX0}, s{sT0}, v{bX0}")
    k.e(f"v_xor_b32 v{bX1}, 64, v{bX0}")
    k.e(f"v_lshrrev_b32 v{vT0}, 2, v{vC}")
    k.e(f"v_and_b32 v{vT1}, 3, v{vC}")
    k.e(f"v_lshlrev_b32 v{vT0}, 6, v{vT0}")
    k.e(f"v_lshl_add_u32 v{vT0}, v{vT1}, 3, v{vT0}")
    k.e(f"v_and_b32 v{vT1}, 1, v{vG}")
    k.e(f"v_lshl_add_u32 v{vT2}, v{vT1}, 5, v{vT0}")
    k.e(f"v_mul_u32_u24 v{vT3}, {NSEG * 1024}, v{vG}")
    k.e(f"v_add_u32 v{bW0}, v{vT2}, v{vT3}")
    k.e(f"s_lshl_b32 s{sT0}, s{sWN}, 8")
    k.e(f"s_add_u32 s{sT0}, s{sT0}, {XB}")
    k.e(f"v_add_u32 v{bW0}, s{sT0}, v{bW0}")
    k.e(f"v_xor_b32 v{bW1}, 32, v{bW0}")
    if HALF:
        k.e(f"v_xor_b32 v{vT1}, s{sWN}, v{vT1}")
        k.e(f"v_lshl_add_u32 v{vT2}, v{vT1}, 5, v{vT0}")
        k.e(f"v_lshl_add_u32 v{bH}, v{vG}, 9, v{vT2}")
        k.e(f"v_add_u32 v{bH}, {XB + 8 * NSEG * 1024}, v{bH}")

    if kind in ("wo", "w2"):
        vRO = vT0
        k.e(f"s_lshl_b32 s{sT0}, s{sMT}, 7")
        k.e(f"s_lshl_b32 s{sT1}, s{sWM}, 6")
        k.e(f"s_add_u32 s{sT0}, s{sT0}, s{sT1}")
        k.e(f"v_add_u32 v{vT1}, s{sT0}, v{vC}")
        k.e(f"v_lshlrev_b32 v{vT1}, 11, v{vT1}")
        k.e(f"s_lshl_b32 s{sT0}, s{sNT}, 7")
        k.e(f"s_lshl_b32 s{sT1}, s{sWN}, 6")
        k.e(f"s_add_u32 s{sT0}, s{sT0}, s{sT1}")
        k.e(f"v_lshl_add_u32 v{vT2}, v{vG}, 3, s{sT0}")
        k.e(f"v_add_u32 v{vRO}, v{vT1}, v{vT2}")
        RT = FR
        for tb in range(4):
            k.e(f"s_mov_b32 s{sT1}, {tb * 16 * 2048}")
            for b in range(2):
                k.e(f"buffer_load_dwordx2 {vr(RT + (tb * 2 + b) * 2, 2)}, v{vRO}, s[{SRD_R}:{SRD_R+3}], s{sT1} offen offset:{b * 32}")
        BT = RT + 16
        if kind == "w2":
            for b in range(2):
                k.e(f"buffer_load_dwordx2 {vr(BT + b * 2, 2)}, v{vT2}, s[{SRD_B}:{SRD_B+3}], 0 offen offset:{b * 32}")
        k.e("s_waitcnt vmcnt(0)")
        if kind == "w2":
            BF = BT + 4
            for b in range(2):
                for j in range(2):
                    k.e(f"v_lshlrev_b32 v{BF + b*4 + 2*j}, 16, v{BT + b*2 + j}")
                    k.e(f"v_and_b32 v{BF + b*4 + 2*j + 1}, 0xffff0000, v{BT + b*2 + j}")
        for tb in range(4):
            for b in range(2):
                for j in range(2):
                    src = RT + (tb * 2 + b) * 2 + j
                    d0 = acc(tb, b) + 2 * j
                    k.e(f"v_lshlrev_b32 v{d0}, 16, v{src}")
                    k.e(f"v_and_b32 v{d0+1}, 0xffff0000, v{src}")
                    if kind == "w2":
                        k.e(f"v_add_f32 v{d0}, v{d0}, v{BF + b*4 + 2*j}")
                        k.e(f"v_add_f32 v{d0+1}, v{d0+1}, v{BF + b*4 + 2*j + 1}")
    else:
        for i in range(16 * NB):
            k.e(f"v_mov_b32 v{ACC + i}, 0")

    def set_addr():
        k.e(f"v_add_u32 v{aX0}, s{sRing}, v{bX0}")
        k.e(f"v_add_u32 v{aX1}, s{sRing}, v{bX1}")
        k.e(f"v_add_u32 v{aW0}, s{sRing}, v{bW0}")
        k.e(f"v_add_u32 v{aW1}, s{sRing}, v{bW1}")
        if HALF:
            k.e(f"v_add_u32 v{aH}, s{sRing}, v{bH}")

    def reads(st, kk):
        r = []
        ax = aX0 if kk == 0 else aX1
        xs = [f"ds_read_b128 {vr(fx(st, tb), 4)}, v{ax} offset:{tb * 2048}" for tb in range(4)]
        ws = []
        for seg in range(NSEG):
            for b in range(2):
                aw = aW0 if b == 0 else aW1
                for sec in range(2):
                    off = (4 * kk * NSEG + seg) * 1024 + sec * 512
                    ws.append(f"ds_read_b64_tr_b16 {vr(fw(st, seg * 2 + b) + 2 * sec, 2)}, v{aw} offset:{off}")
        if HALF:
            for sec in range(2):
                ws.append(f"ds_read_b64_tr_b16 {vr(fw(st, 2 * NSEG) + 2 * sec, 2)}, v{aH} offset:{kk * 2048 + sec * 256}")
        r = [xs[0]] + ws[:4] + xs[1:] + ws[4:]
        return r

    def mfmas(st):
        m = []
        for blk in range(NB):
            for tb in range(4):
                a = acc(tb, blk)
                swapped = (kind == "qkv" and blk >= 4)
                if swapped:
                    m.append(f"v_mfma_f32_16x16x32_bf16 {vr(a, 4)}, {vr(fx(st, tb), 4)}, {vr(fw(st, blk), 4)}, {vr(a, 4)}")
                else:
                    m.append(f"v_mfma_f32_16x16x32_bf16 {vr(a, 4)}, {vr(fw(st, blk), 4)}, {vr(fx(st, tb), 4)}, {vr(a, 4)}")
        if no_compute:
            m = m[:1]
        return m

    def interleave(m, r):
        out = []
        i = j = 0
        while i < len(m) or j < len(r):
            if i < len(m):
                out.append(m[i]); i += 1
            if j < len(r):
                out.append(r[j]); j += 1
        for x in out:
            k.e(x)

    k.e(f"s_mov_b32 s{sRing}, 0")
    k.e(f"s_mov_b32 s{sCnt}, {NS - 1}")
    set_addr()
    k.e("s_barrier")
    for x in reads(0, 0):
        k.e(x)
    L_loop = f"L_{kind}_cloop"
    k.label(L_loop)
    k.e("s_waitcnt lgkmcnt(0)")
    interleave(mfmas(0), reads(1, 1))
    k.e(f"s_add_u32 s{sRing}, s{sRing}, {STAGE}")
    k.e(f"s_cmp_eq_u32 s{sRing}, {LDS}")
    k.e(f"s_cselect_b32 s{sRing}, 0, s{sRing}")
    k.e("s_waitcnt lgkmcnt(0)")
    k.e("s_barrier")
    set_addr()
    interleave(mfmas(1), reads(0, 0))
    k.e(f"s_sub_u32 s{sCnt}, s{sCnt}, 1")
    k.e(f"s_cmp_lg_u32 s{sCnt}, 0")
    k.e(f"s_cbranch_scc1 {L_loop}")
    k.e("s_waitcnt lgkmcnt(0)")
    interleave(mfmas(0), reads(1, 1))
    k.e("s_waitcnt lgkmcnt(0)")
    interleave(mfmas(1), [])

    E = FR
    if kind in ("qkv", "w1"):
        k.e("s_barrier")
    if kind == "qkv":
        qs = (32 ** -0.5) * math.log2(math.e)
        vAB = E
        vABq = E + 8
        vCS = E + 16
        vVS = E + 32
        vCV = E + 64
        vPK = E + 68
        vAD, vST = vT0, vT1
        assert vPK + 8 <= max(VEND, 256)
        VEND = max(VEND, vPK + 8)
        k.e(f"s_lshl_b32 s{sT0}, s{sWM}, 9")
        k.e(f"v_lshl_add_u32 v{vAD}, v{vC}, 3, s{sT0}")
        for tb in range(4):
            k.e(f"ds_read_b64 {vr(vAB + 2 * tb, 2)}, v{vAD} offset:{T_AB + tb * 128}")
        k.e(f"v_lshl_add_u32 v{vAD}, v{vG}, 5, s{sT0}")
        for tb in range(4):
            for hh in range(2):
                k.e(f"ds_read_b128 {vr(vVS + 8 * tb + 4 * hh, 4)}, v{vAD} offset:{T_AB + tb * 128 + hh * 16}")
        k.e(f"s_lshl_b32 s{sT0}, s{sWN}, 7")
        k.e(f"v_lshl_add_u32 v{vAD}, v{vG}, 4, s{sT0}")
        for seg in range(2):
            for b in range(2):
                k.e(f"ds_read_b128 {vr(vCS + (seg * 2 + b) * 4, 4)}, v{vAD} offset:{T_CS + seg * 256 + b * 64}")
        k.e(f"v_lshl_add_u32 v{vAD}, v{vC}, 2, s{sT0}")
        for e_ in range(2):
            k.e(f"ds_read_b32 v{vCV + e_}, v{vAD} offset:{T_CS + 512 + e_ * 64}")
        k.e(f"v_and_b32 v{vST}, 3, v{vC}")
        k.e(f"v_bfe_u32 v{vT2}, v{vC}, 2, 1")
        k.e(f"v_lshl_or_b32 v{vST}, v{vT2}, 3, v{vST}")
        k.e(f"v_bfe_u32 v{vT2}, v{vC}, 3, 1")
        k.e(f"v_lshl_or_b32 v{vST}, v{vT2}, 2, v{vST}")
        k.e(f"v_lshlrev_b32 v{vST}, 4, v{vST}")
        k.e(f"v_and_b32 v{vT2}, 1, v{vG}")
        k.e(f"v_lshl_or_b32 v{vST}, v{vT2}, 10, v{vST}")
        k.e(f"v_lshrrev_b32 v{vT2}, 1, v{vG}")
        k.e(f"v_lshl_or_b32 v{vST}, v{vT2}, 9, v{vST}")
        k.e(f"s_lshl_b32 s{sT0}, s{sNT}, 1")
        k.e(f"s_add_u32 s{sT0}, s{sT0}, s{sWN}")
        k.e(f"s_lshl_b32 s{sT0}, s{sT0}, 6")
        k.e(f"s_lshl_b32 s{sT1}, s{sMT}, 2")
        k.e(f"s_add_u32 s{sT0}, s{sT0}, s{sT1}")
        k.e(f"s_lshl_b32 s{sT1}, s{sWM}, 1")
        k.e(f"s_add_u32 s{sT0}, s{sT0}, s{sT1}")
        k.e(f"s_lshl_b32 s{sT0}, s{sT0}, 11")
        sQ, sK_, sV = sKx, sKw, sRx
        k.e(f"s_add_u32 s{sQ}, s{sT0}, {WS_QF}")
        k.e(f"s_add_u32 s{sK_}, s{sT0}, {WS_KF}")
        k.e(f"s_add_u32 s{sV}, s{sT0}, {WS_VF}")
        k.e(f"s_mov_b32 s{sT1}, {f32(qs)}")
        k.e("s_waitcnt lgkmcnt(0)")
        for i in range(8):
            k.e(f"v_mul_f32 v{vABq + i}, s{sT1}, v{vAB + i}")
        pk = 0
        for seg in range(2):
            ab = vABq if seg == 0 else vAB
            for tb in range(4):
                P4 = vPK + 4 * (pk & 1)
                pk += 1
                for b in range(2):
                    a = acc(tb, seg * 2 + b)
                    for q in range(4):
                        k.e(f"v_mul_f32 v{vT2}, v{ab + 2*tb + 1}, v{vCS + (seg*2+b)*4 + q}")
                        k.e(f"v_fma_f32 v{a+q}, v{a+q}, v{ab + 2*tb}, v{vT2}")
                    k.e(f"v_cvt_pk_bf16_f32 v{P4 + 2*b}, v{a}, v{a+1}")
                    k.e(f"v_cvt_pk_bf16_f32 v{P4 + 2*b + 1}, v{a+2}, v{a+3}")
                k.e("s_nop 1")
                k.e(f"v_permlane16_swap_b32 v{P4}, v{P4+2}")
                k.e(f"v_permlane16_swap_b32 v{P4+1}, v{P4+3}")
                k.e(f"buffer_store_dwordx4 {vr(P4, 4)}, v{vST}, s[{SRD_O}:{SRD_O+3}], s{sQ if seg == 0 else sK_} offen offset:{(tb >> 1) * 2048 + (tb & 1) * 256}")
        for tp in range(2):
            for e_ in range(2):
                P4 = vPK + 4 * (pk & 1)
                pk += 1
                for t2 in range(2):
                    tb = tp * 2 + t2
                    a = acc(tb, 4 + e_)
                    for q in range(4):
                        k.e(f"v_mul_f32 v{vT2}, v{vVS + 8*tb + 2*q + 1}, v{vCV + e_}")
                        k.e(f"v_fma_f32 v{a+q}, v{a+q}, v{vVS + 8*tb + 2*q}, v{vT2}")
                    k.e(f"v_cvt_pk_bf16_f32 v{P4 + 2*t2}, v{a}, v{a+1}")
                    k.e(f"v_cvt_pk_bf16_f32 v{P4 + 2*t2 + 1}, v{a+2}, v{a+3}")
                k.e("s_nop 1")
                k.e(f"v_permlane16_swap_b32 v{P4}, v{P4+2}")
                k.e(f"v_permlane16_swap_b32 v{P4+1}, v{P4+3}")
                k.e(f"buffer_store_dwordx4 {vr(P4, 4)}, v{vST}, s[{SRD_O}:{SRD_O+3}], s{sV} offen offset:{tp * 2048 + e_ * 256}")
    elif kind == "w1":
        vAB = E
        vCS = E + 8
        vB1 = E + 36
        vPK = E + 64
        vG1, vG2 = E + 72, E + 76
        VEND = max(VEND, E + 80)
        vAD, vST, vSTH = vT0, vT1, vT3
        k.e(f"s_lshl_b32 s{sT0}, s{sWM}, 9")
        k.e(f"v_lshl_add_u32 v{vAD}, v{vC}, 3, s{sT0}")
        for tb in range(4):
            k.e(f"ds_read_b64 {vr(vAB + 2 * tb, 2)}, v{vAD} offset:{T_AB + tb * 128}")
        k.e(f"s_lshl_b32 s{sT0}, s{sWN}, 7")
        k.e(f"v_lshl_add_u32 v{vAD}, v{vG}, 4, s{sT0}")
        for seg in range(3):
            for b in range(2):
                k.e(f"ds_read_b128 {vr(vCS + (seg * 2 + b) * 4, 4)}, v{vAD} offset:{T_CS + seg * 256 + b * 64}")
                k.e(f"ds_read_b128 {vr(vB1 + (seg * 2 + b) * 4, 4)}, v{vAD} offset:{T_B1 + seg * 256 + b * 64}")
        k.e(f"s_lshl_b32 s{sT0}, s{sWN}, 6")
        k.e(f"v_lshl_add_u32 v{vAD}, v{vG}, 4, s{sT0}")
        k.e(f"ds_read_b128 {vr(vCS + 24, 4)}, v{vAD} offset:{T_CS + 768}")
        k.e(f"ds_read_b128 {vr(vB1 + 24, 4)}, v{vAD} offset:{T_B1 + 768}")
        k.e(f"s_lshl_b32 s{sT0}, s{sMT}, 7")
        k.e(f"s_lshl_b32 s{sT1}, s{sWM}, 6")
        k.e(f"s_add_u32 s{sT0}, s{sT0}, s{sT1}")
        k.e(f"v_add_u32 v{vT2}, s{sT0}, v{vC}")
        k.e(f"s_mov_b32 s{sT1}, {F * 2}")
        k.e(f"v_mul_lo_u32 v{vST}, v{vT2}, s{sT1}")
        k.e(f"v_and_b32 v{vG1}, 1, v{vG}")
        k.e(f"v_lshrrev_b32 v{vG2}, 1, v{vG}")
        k.e(f"v_mul_u32_u24 v{vSTH}, {16 * F * 2}, v{vG1}")
        k.e(f"v_add_u32 v{vSTH}, v{vSTH}, v{vST}")
        k.e(f"v_lshl_add_u32 v{vSTH}, v{vG2}, 4, v{vSTH}")
        k.e(f"s_lshl_b32 s{sT0}, s{sNT}, 6")
        k.e(f"s_lshl_b32 s{sT1}, s{sWN}, 5")
        k.e(f"s_add_u32 s{sT0}, s{sT0}, s{sT1}")
        k.e(f"s_add_u32 s{sT0}, s{sT0}, {3072 * 2}")
        k.e(f"v_add_u32 v{vSTH}, s{sT0}, v{vSTH}")
        k.e(f"v_lshl_add_u32 v{vST}, v{vG1}, 5, v{vST}")
        k.e(f"v_lshl_add_u32 v{vST}, v{vG2}, 4, v{vST}")
        k.e(f"s_mul_i32 s{sT0}, s{sNT}, 384")
        k.e(f"s_lshl_b32 s{sT1}, s{sWN}, 6")
        k.e(f"s_add_u32 s{sT0}, s{sT0}, s{sT1}")
        k.e(f"v_add_u32 v{vST}, s{sT0}, v{vST}")
        c0 = math.sqrt(2.0 / math.pi)
        kk1 = -2.0 * c0 * math.log2(math.e)
        kk3 = kk1 * 0.044715
        sK1, sK3 = sKx, sKw
        k.e(f"s_mov_b32 s{sK1}, {f32(kk1)}")
        k.e(f"s_mov_b32 s{sK3}, {f32(kk3)}")
        k.e(f"v_mov_b32 v{vT2}, s{sK1}")
        k.e("s_waitcnt lgkmcnt(0)")

        def gelu4(a, tb, blk):
            for q in range(4):
                k.e(f"v_fma_f32 v{vG1+q}, v{vAB + 2*tb + 1}, v{vCS + blk*4 + q}, v{vB1 + blk*4 + q}")
            for q in range(4):
                k.e(f"v_fma_f32 v{a+q}, v{a+q}, v{vAB + 2*tb}, v{vG1+q}")
            for q in range(4):
                k.e(f"v_mul_f32 v{vG1+q}, v{a+q}, v{a+q}")
            for q in range(4):
                k.e(f"v_fma_f32 v{vG1+q}, v{vG1+q}, s{sK3}, v{vT2}")
            for q in range(4):
                k.e(f"v_mul_f32 v{vG1+q}, v{vG1+q}, v{a+q}")
            for q in range(4):
                k.e(f"v_exp_f32 v{vG1+q}, v{vG1+q}")
            for q in range(4):
                k.e(f"v_add_f32 v{vG1+q}, 1.0, v{vG1+q}")
            for q in range(4):
                k.e(f"v_rcp_f32 v{vG1+q}, v{vG1+q}")
            for q in range(4):
                k.e(f"v_mul_f32 v{a+q}, v{a+q}, v{vG1+q}")

        pk = 0
        for tb in range(4):
            k.e(f"s_mov_b32 s{sT1}, {tb * 16 * F * 2}")
            for seg in range(3):
                P4 = vPK + 4 * (pk & 1)
                pk += 1
                for b in range(2):
                    a = acc(tb, seg * 2 + b)
                    gelu4(a, tb, seg * 2 + b)
                    k.e(f"v_cvt_pk_bf16_f32 v{P4 + 2*b}, v{a}, v{a+1}")
                    k.e(f"v_cvt_pk_bf16_f32 v{P4 + 2*b + 1}, v{a+2}, v{a+3}")
                k.e("s_nop 1")
                k.e(f"v_permlane16_swap_b32 v{P4}, v{P4+2}")
                k.e(f"v_permlane16_swap_b32 v{P4+1}, v{P4+3}")
                k.e(f"buffer_store_dwordx4 {vr(P4, 4)}, v{vST}, s[{SRD_O}:{SRD_O+3}], s{sT1} offen offset:{seg * 128}")
        for tp in range(2):
            k.e(f"s_mov_b32 s{sT1}, {tp * 32 * F * 2}")
            P4 = vPK + 4 * (pk & 1)
            pk += 1
            for t2 in range(2):
                tb = tp * 2 + t2
                a = acc(tb, 6)
                gelu4(a, tb, 6)
                k.e(f"v_cvt_pk_bf16_f32 v{P4 + 2*t2}, v{a}, v{a+1}")
                k.e(f"v_cvt_pk_bf16_f32 v{P4 + 2*t2 + 1}, v{a+2}, v{a+3}")
            k.e("s_nop 1")
            k.e(f"v_permlane16_swap_b32 v{P4}, v{P4+2}")
            k.e(f"v_permlane16_swap_b32 v{P4+1}, v{P4+3}")
            k.e(f"buffer_store_dwordx4 {vr(P4, 4)}, v{vSTH}, s[{SRD_O}:{SRD_O+3}], s{sT1} offen")
    else:
        vPK = E
        vM = E + 16
        vQ = E + 20
        vU = E + 24
        vW_ = E + 32
        VEND = max(VEND, E + 40)
        vST = vT1
        k.e("s_nop 7")
        k.e(f"s_lshl_b32 s{sT0}, s{sMT}, 7")
        k.e(f"s_lshl_b32 s{sT1}, s{sWM}, 6")
        k.e(f"s_add_u32 s{sT0}, s{sT0}, s{sT1}")
        k.e(f"v_add_u32 v{vST}, s{sT0}, v{vC}")
        k.e(f"v_lshlrev_b32 v{vST}, 11, v{vST}")
        k.e(f"v_and_b32 v{vT2}, 1, v{vG}")
        k.e(f"v_lshl_add_u32 v{vST}, v{vT2}, 5, v{vST}")
        k.e(f"v_lshrrev_b32 v{vT2}, 1, v{vG}")
        k.e(f"v_lshl_add_u32 v{vST}, v{vT2}, 4, v{vST}")
        k.e(f"s_lshl_b32 s{sT0}, s{sNT}, 7")
        k.e(f"s_lshl_b32 s{sT1}, s{sWN}, 6")
        k.e(f"s_add_u32 s{sT0}, s{sT0}, s{sT1}")
        k.e(f"v_add_u32 v{vST}, s{sT0}, v{vST}")
        for tb in range(4):
            P4 = vPK + 4 * tb
            for b in range(2):
                a = acc(tb, b)
                k.e(f"v_cvt_pk_bf16_f32 v{P4 + 2*b}, v{a}, v{a+1}")
                k.e(f"v_cvt_pk_bf16_f32 v{P4 + 2*b + 1}, v{a+2}, v{a+3}")
            for j in range(4):
                k.e(f"v_lshlrev_b32 v{vU + 2*j}, 16, v{P4 + j}")
                k.e(f"v_and_b32 v{vU + 2*j + 1}, 0xffff0000, v{P4 + j}")
            k.e(f"v_permlane16_swap_b32 v{P4}, v{P4+2}")
            k.e(f"v_permlane16_swap_b32 v{P4+1}, v{P4+3}")
            k.e(f"s_mov_b32 s{sT1}, {tb * 16 * 2048}")
            k.e(f"buffer_store_dwordx4 {vr(P4, 4)}, v{vST}, s[{SRD_O}:{SRD_O+3}], s{sT1} offen")
            for j in range(4):
                k.e(f"v_add_f32 v{vW_ + j}, v{vU + 2*j}, v{vU + 2*j + 1}")
            k.e(f"v_add_f32 v{vW_}, v{vW_}, v{vW_+1}")
            k.e(f"v_add_f32 v{vW_+2}, v{vW_+2}, v{vW_+3}")
            k.e(f"v_add_f32 v{vW_}, v{vW_}, v{vW_+2}")
            k.e(f"v_mul_f32 v{vM + tb}, 0.125, v{vW_}")
            for j in range(8):
                k.e(f"v_sub_f32 v{vU + j}, v{vU + j}, v{vM + tb}")
            k.e(f"v_mul_f32 v{vQ + tb}, v{vU}, v{vU}")
            k.e(f"v_mul_f32 v{vW_}, v{vU+1}, v{vU+1}")
            for j in range(2, 8, 2):
                k.e(f"v_fmac_f32 v{vQ + tb}, v{vU + j}, v{vU + j}")
                k.e(f"v_fmac_f32 v{vW_}, v{vU + j + 1}, v{vU + j + 1}")
            k.e(f"v_add_f32 v{vQ + tb}, v{vQ + tb}, v{vW_}")

        def combine(ma, mb, qa, qb, n_each):
            k.e(f"v_sub_f32 v{vW_}, v{ma}, v{mb}")
            k.e(f"v_add_f32 v{ma}, v{ma}, v{mb}")
            k.e(f"v_add_f32 v{qa}, v{qa}, v{qb}")
            k.e(f"v_mul_f32 v{vW_+1}, {f32(n_each / 2.0)}, v{vW_}")
            k.e(f"v_mul_f32 v{ma}, 0.5, v{ma}")
            k.e(f"v_fmac_f32 v{qa}, v{vW_}, v{vW_+1}")

        k.e("s_nop 1")
        k.e(f"v_permlane16_swap_b32 v{vM}, v{vM+1}")
        k.e(f"v_permlane16_swap_b32 v{vQ}, v{vQ+1}")
        k.e(f"v_permlane16_swap_b32 v{vM+2}, v{vM+3}")
        k.e(f"v_permlane16_swap_b32 v{vQ+2}, v{vQ+3}")
        combine(vM, vM + 1, vQ, vQ + 1, 8)
        combine(vM + 2, vM + 3, vQ + 2, vQ + 3, 8)
        k.e("s_nop 1")
        k.e(f"v_permlane32_swap_b32 v{vM}, v{vM+2}")
        k.e(f"v_permlane32_swap_b32 v{vQ}, v{vQ+2}")
        combine(vM, vM + 2, vQ, vQ + 2, 16)
        k.e(f"v_mov_b32 v{vM+1}, v{vQ}")
        k.e(f"s_lshl_b32 s{sT0}, s{sWM}, 9")
        k.e(f"v_lshl_add_u32 v{vT2}, v0, 3, s{sT0}")
        L_w0 = f"L_{kind}_w0"
        k.e(f"s_cmp_eq_u32 s{sWN}, 0")
        k.e(f"s_cbranch_scc1 {L_w0}")
        k.e(f"ds_write_b64 v{vT2}, {vr(vM, 2)} offset:{T_ST}")
        k.e("s_waitcnt lgkmcnt(0)")
        k.e("s_barrier")
        k.e("s_endpgm")
        k.label(L_w0)
        k.e("s_barrier")
        k.e(f"ds_read_b64 {vr(vM+2, 2)}, v{vT2} offset:{T_ST}")
        k.e("s_waitcnt lgkmcnt(0)")
        combine(vM, vM + 2, vM + 1, vM + 3, 32)
        k.e(f"s_lshl_b32 s{sT0}, s{sMT}, 7")
        k.e(f"s_lshl_b32 s{sT1}, s{sWM}, 6")
        k.e(f"s_add_u32 s{sT0}, s{sT0}, s{sT1}")
        k.e(f"v_add_u32 v{vT2}, s{sT0}, v0")
        k.e(f"v_lshlrev_b32 v{vT2}, 7, v{vT2}")
        k.e(f"s_lshl_b32 s{sT0}, s{sNT}, 3")
        k.e(f"s_add_u32 s{sT0}, s{sT0}, {(WS_ST1 if kind == 'wo' else WS_ST0) - WS_ST0}")
        k.e(f"buffer_store_dwordx2 {vr(vM, 2)}, v{vT2}, s[{SRD_T}:{SRD_T+3}], s{sT0} offen")
    k.e("s_endpgm")

    k.label(L_loader)
    sLW = sWM
    k.e(f"s_sub_u32 s{sLW}, s{sWave}, 4")
    vXO = 8
    vWO = 12
    vHO = 20
    vSTt = 24
    vCSt = 44
    vB1t = 48
    vA_, vBm = 50, 51
    t0, t1, t2, t3 = 1, 2, 3, 4
    has_tab = kind in ("qkv", "w1")
    if has_tab:
        k.e(f"v_and_b32 v{t0}, 31, v0")
        k.e(f"s_lshl_b32 s{sT0}, s{sMT}, 7")
        k.e(f"s_lshl_b32 s{sT1}, s{sLW}, 5")
        k.e(f"s_add_u32 s{sT0}, s{sT0}, s{sT1}")
        k.e(f"v_add_u32 v{t0}, s{sT0}, v{t0}")
        k.e(f"v_lshlrev_b32 v{t0}, 7, v{t0}")
        k.e(f"v_lshrrev_b32 v{t1}, 5, v0")
        k.e(f"v_lshl_add_u32 v{t0}, v{t1}, 6, v{t0}")
        k.e(f"s_mov_b32 s{sT0}, {(WS_ST0 if kind == 'qkv' else WS_ST1) - WS_ST0}")
        for j in range(4):
            k.e(f"buffer_load_dwordx4 {vr(vSTt + 4*j, 4)}, v{t0}, s[{SRD_T}:{SRD_T+3}], s{sT0} offen offset:{16*j}")
        if kind == "qkv":
            k.e(f"s_min_u32 s{sT0}, s{sLW}, 2")
            k.e(f"s_lshl_b32 s{sT0}, s{sT0}, 10")
            k.e(f"s_lshl_b32 s{sT1}, s{sNT}, 6")
            k.e(f"s_add_u32 s{sT0}, s{sT0}, s{sT1}")
            k.e(f"v_add_u32 v{t1}, s{sT0}, v0")
            csb, csn = WS_CSQ - WS_ST0, 3072
        else:
            k.e(f"s_mul_i32 s{sT0}, s{sNT}, 192")
            k.e(f"s_lshl_b32 s{sT1}, s{sLW}, 6")
            k.e(f"s_add_u32 s{sT0}, s{sT0}, s{sT1}")
            k.e(f"s_lshl_b32 s{sT1}, s{sNT}, 5")
            k.e(f"s_add_u32 s{sT1}, s{sT1}, 3072")
            k.e(f"s_cmp_eq_u32 s{sLW}, 3")
            k.e(f"s_cselect_b32 s{sT0}, s{sT1}, s{sT0}")
            k.e(f"s_cselect_b32 s{sT1}, 31, 63")
            k.e(f"v_and_b32 v{t1}, s{sT1}, v0")
            k.e(f"v_add_u32 v{t1}, s{sT0}, v{t1}")
            csb, csn = WS_CS1 - WS_ST0, 3584
        k.e(f"v_lshlrev_b32 v{t2}, 2, v{t1}")
        for j in range(4):
            k.e(f"s_mov_b32 s{sT0}, {csb + j * csn * 4}")
            k.e(f"buffer_load_dword v{vCSt + j}, v{t2}, s[{SRD_T}:{SRD_T+3}], s{sT0} offen")
        if kind == "w1":
            k.e(f"v_lshlrev_b32 v{t2}, 1, v{t1}")
            k.e(f"buffer_load_ushort v{vB1t}, v{t2}, s[{SRD_B}:{SRD_B+3}], 0 offen")
    k.e(f"v_lshrrev_b32 v{t0}, 3, v0")
    k.e(f"v_lshrrev_b32 v{t1}, 1, v{t0}")
    k.e(f"s_and_b32 s{sT0}, s{sLW}, 1")
    k.e(f"s_lshl_b32 s{sT1}, s{sT0}, 2")
    k.e(f"v_add_u32 v{t1}, s{sT1}, v{t1}")
    k.e(f"v_and_b32 v{t2}, 7, v0")
    k.e(f"v_xor_b32 v{t1}, v{t1}, v{t2}")
    k.e(f"v_lshlrev_b32 v{t1}, 4, v{t1}")
    k.e(f"s_lshl_b32 s{sT1}, s{sLW}, 3")
    k.e(f"v_add_u32 v{t0}, s{sT1}, v{t0}")
    k.e(f"v_mul_u32_u24 v{t0}, {lda2}, v{t0}")
    k.e(f"v_add_u32 v{vXO}, v{t0}, v{t1}")
    for jj in range(1, 4):
        k.e(f"v_add_u32 v{vXO + jj}, {jj * 32 * lda2}, v{vXO}")
    k.e(f"v_lshrrev_b32 v{t0}, 5, v0")
    k.e(f"v_bfe_u32 v{t1}, v0, 2, 2")
    k.e(f"v_lshl_add_u32 v{t0}, v{t0}, 2, v{t1}")
    k.e(f"v_add_u32 v{t0}, s{sT1}, v{t0}")
    k.e(f"v_mul_u32_u24 v{t0}, {ldw2}, v{t0}")
    k.e(f"v_and_b32 v{t1}, 3, v0")
    k.e(f"s_lshl_b32 s{sT0}, s{sT0}, 1")
    k.e(f"v_xor_b32 v{t1}, s{sT0}, v{t1}")
    k.e(f"v_bfe_u32 v{t2}, v0, 4, 1")
    k.e(f"v_lshl_add_u32 v{t1}, v{t2}, 2, v{t1}")
    k.e(f"v_lshl_add_u32 v{t0}, v{t1}, 4, v{t0}")
    if kind == "qkv":
        k.e(f"s_lshl_b32 s{sT0}, s{sNT}, 7")
        segoff = [0, 2048, 4096]
    elif kind == "w1":
        k.e(f"s_mul_i32 s{sT0}, s{sNT}, 384")
        segoff = [0, 128, 256]
    else:
        k.e(f"s_lshl_b32 s{sT0}, s{sNT}, 7")
        segoff = [0]
    k.e(f"v_add_u32 v{t0}, s{sT0}, v{t0}")
    for uu in range(2):
        for seg in range(NSEG):
            k.e(f"v_add_u32 v{vWO + uu * NSEG + seg}, {uu * 32 * ldw2 + segoff[seg]}, v{t0}")
    if HALF:
        k.e(f"v_lshrrev_b32 v{t0}, 2, v0")
        k.e(f"s_lshl_b32 s{sT1}, s{sLW}, 4")
        k.e(f"v_add_u32 v{t0}, s{sT1}, v{t0}")
        k.e(f"v_mul_u32_u24 v{t0}, {ldw2}, v{t0}")
        k.e(f"v_lshrrev_b32 v{t1}, 5, v0")
        k.e(f"v_lshlrev_b32 v{t1}, 1, v{t1}")
        k.e(f"v_and_b32 v{t2}, 3, v0")
        k.e(f"v_xor_b32 v{t1}, v{t1}, v{t2}")
        k.e(f"v_lshl_add_u32 v{t0}, v{t1}, 4, v{t0}")
        k.e(f"s_lshl_b32 s{sT0}, s{sNT}, 6")
        k.e(f"s_add_u32 s{sT0}, s{sT0}, {3072 * 2}")
        k.e(f"v_add_u32 v{vHO}, s{sT0}, v{t0}")
    sLX, sLWb = 53, 54
    k.e(f"s_lshl_b32 s{sLX}, s{sLW}, 10")
    k.e(f"s_mul_i32 s{sLWb}, s{sLW}, {NSEG * 1024}")
    k.e(f"s_add_u32 s{sLWb}, s{sLWb}, {XB}")
    k.e(f"s_mov_b32 s{sRing}, 0")
    k.e(f"s_mov_b32 s{sKx}, 0")
    k.e(f"s_mov_b32 s{sKw}, 0")

    def issue_stage():
        k.e(f"s_add_u32 s{sRx}, s{sRing}, s{sLX}")
        k.e(f"s_add_u32 s{sRw}, s{sRing}, s{sLWb}")
        seq = []
        for uu in range(2):
            for seg in range(NSEG):
                seq.append((sRw, (4 * uu * NSEG + seg) * 1024, vWO + uu * NSEG + seg, SRD_W, sKw))
        xs = [(sRx, jj * 4096, vXO + jj, SRD_A, sKx) for jj in range(4)]
        if HALF:
            seq.append((sRx, XB + 8 * NSEG * 1024, vHO, SRD_W, sKw))
        seq = xs[:2] + seq[:NSEG] + xs[2:] + seq[NSEG:]
        for (sb, imm, vo, srd, sk) in seq:
            k.e(f"s_add_u32 m0, s{sb}, {imm}")
            k.e("s_nop 0")
            k.e(f"buffer_load_dwordx4 v{vo}, s[{srd}:{srd+3}], s{sk} offen lds")
        k.e(f"s_add_u32 s{sKx}, s{sKx}, {BK * 2}")
        k.e(f"s_add_u32 s{sKw}, s{sKw}, {BK * ldw2}")
        k.e(f"s_add_u32 s{sRing}, s{sRing}, {STAGE}")
        k.e(f"s_cmp_eq_u32 s{sRing}, {LDS}")
        k.e(f"s_cselect_b32 s{sRing}, 0, s{sRing}")

    for s in range(S):
        issue_stage()
    if has_tab:
        k.e(f"s_waitcnt vmcnt({P * S})")
        m = [vSTt + 2 * j for j in range(8)]
        q = [vSTt + 2 * j + 1 for j in range(8)]
        k.e(f"v_add_f32 v{t0}, v{m[0]}, v{m[1]}")
        k.e(f"v_add_f32 v{t1}, v{m[2]}, v{m[3]}")
        k.e(f"v_add_f32 v{t2}, v{m[4]}, v{m[5]}")
        k.e(f"v_add_f32 v{t3}, v{m[6]}, v{m[7]}")
        k.e(f"v_add_f32 v{t0}, v{t0}, v{t1}")
        k.e(f"v_add_f32 v{t2}, v{t2}, v{t3}")
        k.e(f"v_add_f32 v{t0}, v{t0}, v{t2}")
        k.e(f"v_mul_f32 v{t0}, 0.125, v{t0}")
        k.e(f"v_mov_b32 v{t1}, 0")
        for j in range(8):
            k.e(f"v_sub_f32 v{m[j]}, v{m[j]}, v{t0}")
            k.e(f"v_fmac_f32 v{t1}, v{m[j]}, v{m[j]}")
        k.e(f"v_mul_f32 v{t1}, 64.0, v{t1}" if False else f"v_mul_f32 v{t1}, {f32(64.0)}, v{t1}")
        for j in range(8):
            k.e(f"v_add_f32 v{t1}, v{t1}, v{q[j]}")
        k.e(f"v_mov_b32 v{t2}, v{t0}")
        k.e(f"v_mov_b32 v{t3}, v{t1}")
        k.e("s_nop 1")
        k.e(f"v_permlane32_swap_b32 v{t0}, v{t2}")
        k.e(f"v_permlane32_swap_b32 v{t1}, v{t3}")
        k.e(f"v_sub_f32 v5, v{t0}, v{t2}")
        k.e(f"v_add_f32 v{t0}, v{t0}, v{t2}")
        k.e(f"v_mul_f32 v{t0}, 0.5, v{t0}")
        k.e(f"v_add_f32 v{t1}, v{t1}, v{t3}")
        k.e(f"v_mul_f32 v6, {f32(256.0)}, v5")
        k.e(f"v_fmac_f32 v{t1}, v5, v6")
        k.e(f"v_mul_f32 v{t1}, {f32(1.0 / 1024)}, v{t1}")
        k.e(f"v_add_f32 v{t2}, {f32(EPS)}, v{t1}")
        k.e(f"v_rsq_f32 v{vA_}, v{t2}")
        k.e("s_nop 0")
        if kind == "w1":
            k.e(f"v_mul_f32 v{t2}, v{vA_}, v{vA_}")
            k.e(f"v_mul_f32 v{t2}, v{t2}, v{t1}")
            k.e(f"v_add_f32 v{t2}, {f32(EPS)}, v{t2}")
            k.e(f"v_rsq_f32 v{t2}, v{t2}")
            k.e("s_nop 0")
            k.e(f"v_mul_f32 v{vA_}, v{vA_}, v{t2}")
        k.e(f"v_mul_f32 v{vBm}, v{vA_}, v{t0}")
        k.e(f"v_sub_f32 v{vBm}, 0, v{vBm}")
        k.e(f"v_add_f32 v{vCSt}, v{vCSt}, v{vCSt+1}")
        k.e(f"v_add_f32 v{vCSt+2}, v{vCSt+2}, v{vCSt+3}")
        k.e(f"v_add_f32 v{vCSt}, v{vCSt}, v{vCSt+2}")
        if kind == "w1":
            k.e(f"v_lshlrev_b32 v{vB1t}, 16, v{vB1t}")
    k.e(f"s_waitcnt vmcnt({P * (S - 1)})")
    k.e("s_barrier")
    nsteady = NS - S
    if nsteady > 0:
        k.e(f"s_mov_b32 s{sCnt}, {nsteady}")
        L_ll = f"L_{kind}_lloop"
        k.label(L_ll)
        k.e(f"s_waitcnt vmcnt({P * (S - 2)})")
        k.e("s_barrier")
        issue_stage()
        k.e(f"s_sub_u32 s{sCnt}, s{sCnt}, 1")
        k.e(f"s_cmp_lg_u32 s{sCnt}, 0")
        k.e(f"s_cbranch_scc1 {L_ll}")
    for s in range(NS - S + 1, NS):
        k.e(f"s_waitcnt vmcnt({P * (NS - 1 - s)})")
        k.e("s_barrier")
    if has_tab:
        k.e(f"v_and_b32 v{t0}, 31, v0")
        k.e(f"s_lshl_b32 s{sT0}, s{sLW}, 8")
        k.e(f"v_lshl_add_u32 v{t0}, v{t0}, 3, s{sT0}")
        k.e(f"ds_write_b64 v{t0}, {vr(vA_, 2)} offset:{T_AB}")
        k.e(f"v_lshl_add_u32 v{t0}, v0, 2, s{sT0}")
        k.e(f"ds_write_b32 v{t0}, v{vCSt} offset:{T_CS}")
        if kind == "w1":
            k.e(f"ds_write_b32 v{t0}, v{vB1t} offset:{T_B1}")
        k.e("s_waitcnt lgkmcnt(0)")
        k.e("s_barrier")
    k.label(L_end)
    k.e("s_endpgm")
    return k.text(), max(VEND, 56), LDS


def gen_attn(opts=None):
    opts = opts or {}
    k = Kern("attn")
    L_end = "L_attn_end"
    sWS = 4
    SRD_Q, SRD_O = 8, 12
    sWave, sHead, sQB, sT0, sT1, sKoff, sVoff, sCnt, sMaxN, sKbase, sTry = range(16, 27)
    vL16 = 1
    vT0, vT1, vT2, vT3 = 2, 3, 4, 5
    vSEL = 8
    vQ = 12
    vK = 28
    vV = 44
    vS = 60
    vNM = 92
    vO = 124
    vL = 156
    vP = 164
    vM = 180
    VEND = 184

    def Q(qt, t): return vQ + (qt * 2 + t) * 4
    def Kf(st, t): return vK + (st * 2 + t) * 4
    def Vf(st, u): return vV + (st * 2 + u) * 4
    def Sx(qt): return vS + qt * 16
    def NM(qt): return vNM + qt * 16
    def O(qt): return vO + qt * 16
    def L(qt): return vL + qt * 4
    def P(qt): return vP + qt * 8

    k.e("s_cmp_ge_u32 s2, 256")
    k.e(f"s_cbranch_scc1 {L_end}")
    k.e(f"s_load_dwordx2 s[{sWS}:{sWS+1}], s[0:1], {KA_WS}")
    k.e("v_lshrrev_b32 v1, 6, v0")
    k.e("v_and_b32 v0, 63, v0")
    k.e(f"v_readfirstlane_b32 s{sWave}, v1")
    k.e(f"v_lshlrev_b32 v{vL16}, 4, v0")
    k.e(f"s_and_b32 s{sT0}, s2, 7")
    k.e(f"s_lshl_b32 s{sHead}, s{sT0}, 2")
    k.e(f"s_lshr_b32 s{sT0}, s2, 6")
    k.e(f"s_add_u32 s{sHead}, s{sHead}, s{sT0}")
    k.e(f"s_lshr_b32 s{sQB}, s2, 3")
    k.e(f"s_and_b32 s{sQB}, s{sQB}, 7")
    k.e("s_waitcnt lgkmcnt(0)")
    make_srd(k, SRD_Q, sWS, nrec=12 * MB + 8192)
    make_srd(k, SRD_O, sWS, off_imm=WS_O, nrec=4 * MB)
    k.e(f"s_and_b32 s{sT0}, s{sWave}, 3")
    k.e(f"s_lshl_b32 s{sT0}, s{sT0}, 1")
    k.e(f"s_lshl_b32 s{sQB}, s{sQB}, 3")
    k.e(f"s_add_u32 s{sQB}, s{sQB}, s{sT0}")
    k.e(f"s_lshl_b32 s{sT1}, s{sHead}, 6")
    k.e(f"s_add_u32 s{sT0}, s{sT1}, s{sQB}")
    k.e(f"s_lshl_b32 s{sT0}, s{sT0}, 11")
    for qt in range(2):
        for t in range(2):
            k.e(f"buffer_load_dwordx4 {vr(Q(qt, t), 4)}, v{vL16}, s[{SRD_Q}:{SRD_Q+3}], s{sT0} offen offset:{qt * 2048 + t * 1024}")
    k.e(f"s_lshr_b32 s{sT0}, s{sWave}, 2")
    k.e(f"s_lshl_b32 s{sT0}, s{sT0}, 5")
    k.e(f"s_add_u32 s{sT0}, s{sT0}, s{sT1}")
    k.e(f"s_lshl_b32 s{sKbase}, s{sT0}, 11")
    k.e(f"s_add_u32 s{sKbase}, s{sKbase}, {WS_KF}")
    k.e(f"v_lshrrev_b32 v{vT0}, 4, v0")
    k.e(f"v_lshrrev_b32 v{vT1}, 2, v0")
    k.e(f"v_xor_b32 v{vT0}, v{vT0}, v{vT1}")
    k.e(f"v_and_b32 v{vT0}, 1, v{vT0}")
    k.e(f"v_cmp_eq_u32 vcc, 0, v{vT0}")
    k.e(f"v_mov_b32 v{vT1}, 0x3f803f80")
    k.e("s_nop 1")
    for j in range(4):
        k.e(f"v_cndmask_b32 v{vSEL + j}, 0, v{vT1}, vcc")
    k.e(f"s_mov_b32 s{sMaxN}, 1")
    k.e(f"s_mov_b32 s{sTry}, 0")

    L_retry = "L_attn_retry"
    k.label(L_retry)
    k.e(f"s_mov_b32 s{sKoff}, s{sKbase}")
    k.e(f"s_mov_b32 s{sCnt}, s{sMaxN}")
    k.e(f"v_mov_b32 v{vM}, 0xff800000")
    k.e(f"v_mov_b32 v{vM+1}, 0xff800000")
    L_mx = "L_attn_maxloop"
    k.label(L_mx)
    for t in range(2):
        k.e(f"buffer_load_dwordx4 {vr(Kf(0, t), 4)}, v{vL16}, s[{SRD_Q}:{SRD_Q+3}], s{sKoff} offen offset:{t * 1024}")
    k.e(f"s_add_u32 s{sKoff}, s{sKoff}, 2048")
    k.e("s_waitcnt vmcnt(0)")
    for qt in range(2):
        k.e(f"v_mfma_f32_32x32x16_bf16 {vr(Sx(qt), 16)}, {vr(Kf(0, 0), 4)}, {vr(Q(qt, 0), 4)}, 0")
        k.e(f"v_mfma_f32_32x32x16_bf16 {vr(Sx(qt), 16)}, {vr(Kf(0, 1), 4)}, {vr(Q(qt, 1), 4)}, {vr(Sx(qt), 16)}")
    k.e("s_nop 15")
    for qt in range(2):
        for i in range(0, 16, 2):
            k.e(f"v_max3_f32 v{vM+qt}, v{Sx(qt)+i}, v{Sx(qt)+i+1}, v{vM+qt}")
    k.e(f"s_sub_u32 s{sCnt}, s{sCnt}, 1")
    k.e(f"s_cmp_lg_u32 s{sCnt}, 0")
    k.e(f"s_cbranch_scc1 {L_mx}")
    for qt in range(2):
        k.e(f"v_mov_b32 v{vT0+qt}, v{vM+qt}")
    k.e("s_nop 1")
    for qt in range(2):
        k.e(f"v_permlane32_swap_b32 v{vM+qt}, v{vT0+qt}")
    for qt in range(2):
        k.e(f"v_max_f32 v{vM+qt}, v{vM+qt}, v{vT0+qt}")
    for qt in range(2):
        for i in range(16):
            k.e(f"v_sub_f32 v{NM(qt)+i}, 0, v{vM+qt}")
        for i in range(16):
            k.e(f"v_mov_b32 v{O(qt)+i}, 0")
        for i in range(4):
            k.e(f"v_mov_b32 v{L(qt)+i}, 0")

    k.e(f"s_mov_b32 s{sKoff}, s{sKbase}")
    k.e(f"s_add_u32 s{sVoff}, s{sKbase}, {WS_VF - WS_KF}")

    def loadK(st):
        r = [f"buffer_load_dwordx4 {vr(Kf(st, t), 4)}, v{vL16}, s[{SRD_Q}:{SRD_Q+3}], s{sKoff} offen offset:{t * 1024}" for t in range(2)]
        r.append(f"s_add_u32 s{sKoff}, s{sKoff}, 2048")
        return r

    def loadV(st):
        r = [f"buffer_load_dwordx4 {vr(Vf(st, u), 4)}, v{vL16}, s[{SRD_Q}:{SRD_Q+3}], s{sVoff} offen offset:{u * 1024}" for u in range(2)]
        r.append(f"s_add_u32 s{sVoff}, s{sVoff}, 2048")
        return r

    def QK(qt, st):
        return [f"v_mfma_f32_32x32x16_bf16 {vr(Sx(qt), 16)}, {vr(Kf(st, 0), 4)}, {vr(Q(qt, 0), 4)}, {vr(NM(qt), 16)}",
                f"v_mfma_f32_32x32x16_bf16 {vr(Sx(qt), 16)}, {vr(Kf(st, 1), 4)}, {vr(Q(qt, 1), 4)}, {vr(Sx(qt), 16)}"]

    def phase(qt, vst, other_qk, pre_wait, pv_wait, tail):
        s = Sx(qt)
        p = P(qt)
        ex = [f"v_exp_f32 v{s+i}, v{s+i}" for i in range(16)]
        cv = [f"v_cvt_pk_bf16_f32 v{p+j}, v{s+2*j}, v{s+2*j+1}" for j in range(8)]
        pv = [f"v_mfma_f32_32x32x16_bf16 {vr(O(qt), 16)}, {vr(Vf(vst, u), 4)}, {vr(p + 4*u, 4)}, {vr(O(qt), 16)}" for u in range(2)]
        lm = [f"v_mfma_f32_16x16x32_bf16 {vr(L(qt), 4)}, {vr(vSEL, 4)}, {vr(p + 4*u, 4)}, {vr(L(qt), 4)}" for u in range(2)]
        seq = []
        if pre_wait:
            seq.append(pre_wait)
        seq.append(other_qk[0])
        seq += ex[0:4]
        seq.append(other_qk[1])
        seq += [ex[4], cv[0], ex[5], cv[1], ex[6], ex[7], ex[8], cv[2], ex[9], cv[3], ex[10], ex[11]]
        if pv_wait:
            seq.append(pv_wait)
        seq.append(pv[0])
        seq += [ex[12], cv[4], ex[13], cv[5]]
        seq.append(lm[0])
        seq += [ex[14], ex[15]]
        seq += [cv[6]]
        seq += tail[:1]
        seq += [cv[7]]
        seq += tail[1:]
        if len(tail) < 3:
            seq.append("s_nop 1")
        seq.append(pv[1])
        seq.append(lm[1])
        for x in seq:
            k.e(x)

    for x in loadK(0) + loadV(0) + loadK(1) + loadV(1):
        k.e(x)
    k.e("s_waitcnt vmcnt(6)")
    for x in QK(0, 0):
        k.e(x)
    k.e("s_nop 7")
    k.e(f"s_mov_b32 s{sCnt}, 16")
    k.e("s_nop 7")
    L_loop = "L_attn_loop"
    k.label(L_loop)
    for st in range(2):
        phase(0, st, QK(1, st), None, "s_waitcnt vmcnt(4)", loadK(st))
        phase(1, st, QK(0, st ^ 1), "s_waitcnt vmcnt(4)", None, [])
        for x in loadV(st):
            k.e(x)
    k.e(f"s_sub_u32 s{sCnt}, s{sCnt}, 1")
    k.e(f"s_cmp_lg_u32 s{sCnt}, 0")
    k.e(f"s_cbranch_scc1 {L_loop}")
    k.e("s_waitcnt vmcnt(0)")
    k.e("s_nop 15")
    k.e(f"v_mov_b32 v{vT0}, {f32(2.0 ** 64)}")
    k.e(f"v_cmp_nle_f32 vcc, v{L(0)}, v{vT0}")
    k.e(f"v_cmp_nle_f32 s[28:29], v{L(1)}, v{vT0}")
    k.e("s_nop 1")
    k.e("s_or_b64 s[28:29], s[28:29], vcc")
    if opts.get("force_fallback"):
        k.e("s_mov_b64 s[28:29], -1")
    L_ok = "L_attn_ok"
    k.e("s_cmp_eq_u64 s[28:29], 0")
    k.e(f"s_cbranch_scc1 {L_ok}")
    k.e(f"s_cmp_lg_u32 s{sTry}, 0")
    k.e(f"s_cbranch_scc1 {L_ok}")
    k.e(f"s_mov_b32 s{sTry}, 1")
    k.e(f"s_mov_b32 s{sMaxN}, 32")
    k.e(f"s_branch {L_retry}")
    k.label(L_ok)
    SLOT = 5 * 1024
    k.e(f"s_mul_i32 s{sT0}, s{sWave}, {SLOT}")
    k.e(f"v_add_u32 v{vT0}, s{sT0}, v{vL16}")
    k.e(f"s_xor_b32 s{sT1}, s{sWave}, 4")
    k.e(f"s_mul_i32 s{sT1}, s{sT1}, {SLOT}")
    k.e(f"v_add_u32 v{vT1}, s{sT1}, v{vL16}")
    L_kh1 = "L_attn_kh1"
    L_fin = "L_attn_fin"
    k.e(f"s_cmp_ge_u32 s{sWave}, 4")
    k.e(f"s_cbranch_scc1 {L_kh1}")
    R = vS
    for kh in range(2):
        if kh == 1:
            k.label(L_kh1)
        send, keep = 1 - kh, kh
        k.e(f"v_mov_b32 v{L(send)+1}, v{vM+send}")
        for g in range(4):
            k.e(f"ds_write_b128 v{vT0}, {vr(O(send) + 4*g, 4)} offset:{g * 1024}")
        k.e(f"ds_write_b128 v{vT0}, {vr(L(send), 4)} offset:4096")
        k.e("s_waitcnt lgkmcnt(0)")
        k.e("s_barrier")
        for g in range(5):
            k.e(f"ds_read_b128 {vr(R + 4*g, 4)}, v{vT1} offset:{g * 1024}")
        k.e("s_waitcnt lgkmcnt(0)")
        mo, lo = R + 17, R + 16
        k.e(f"v_max_f32 v{vT2}, v{vM+keep}, v{mo}")
        k.e(f"v_sub_f32 v{vT3}, v{vM+keep}, v{vT2}")
        k.e(f"v_sub_f32 v{vT2}, v{mo}, v{vT2}")
        k.e(f"v_exp_f32 v{vT3}, v{vT3}")
        k.e(f"v_exp_f32 v{vT2}, v{vT2}")
        k.e("s_nop 0")
        k.e(f"v_mul_f32 v{R+18}, v{vT3}, v{L(keep)}")
        k.e(f"v_fmac_f32 v{R+18}, v{vT2}, v{lo}")
        k.e(f"v_rcp_f32 v{R+18}, v{R+18}")
        k.e("s_nop 0")
        k.e(f"v_mul_f32 v{vT3}, v{vT3}, v{R+18}")
        k.e(f"v_mul_f32 v{vT2}, v{vT2}, v{R+18}")
        for i in range(16):
            k.e(f"v_mul_f32 v{R+i}, v{R+i}, v{vT2}")
            k.e(f"v_fmac_f32 v{R+i}, v{O(keep)+i}, v{vT3}")
        for j in range(8):
            k.e(f"v_cvt_pk_bf16_f32 v{vP+j}, v{R+2*j}, v{R+2*j+1}")
        k.e(f"s_add_u32 s{sT0}, s{sQB}, {keep}")
        if kh == 0:
            k.e(f"s_branch {L_fin}")
    k.label(L_fin)
    k.e(f"v_and_b32 v{vT0}, 0x13, v0")
    k.e(f"v_bfe_u32 v{vT1}, v0, 2, 1")
    k.e(f"v_lshl_or_b32 v{vT0}, v{vT1}, 3, v{vT0}")
    k.e(f"v_bfe_u32 v{vT1}, v0, 3, 1")
    k.e(f"v_lshl_or_b32 v{vT0}, v{vT1}, 2, v{vT0}")
    k.e(f"v_lshlrev_b32 v{vT0}, 11, v{vT0}")
    k.e(f"v_lshrrev_b32 v{vT1}, 5, v0")
    k.e(f"v_lshl_or_b32 v{vT0}, v{vT1}, 4, v{vT0}")
    k.e(f"s_lshl_b32 s{sT0}, s{sT0}, 16")
    k.e(f"s_lshl_b32 s{sT1}, s{sHead}, 6")
    k.e(f"s_add_u32 s{sT0}, s{sT0}, s{sT1}")
    for a in range(2):
        k.e(f"buffer_store_dwordx4 {vr(vP + 4*a, 4)}, v{vT0}, s[{SRD_O}:{SRD_O+3}], s{sT0} offen offset:{a * 32}")
    k.label(L_end)
    k.e("s_endpgm")
    return k.text(), VEND, 8 * SLOT


def gen_prep():
    k = Kern("prep")
    NQ, N1 = 24 * 4, 28 * 4
    NCS = NQ + N1
    NST = 128
    L_end = "L_prep_end"
    L_st = "L_prep_stats"
    k.e(f"s_cmp_ge_u32 s2, {NCS + NST}")
    k.e(f"s_cbranch_scc1 {L_end}")
    k.e(f"s_load_dwordx2 s[4:5], s[0:1], {KA_X}")
    k.e(f"s_load_dwordx2 s[6:7], s[0:1], {KA_WQKV}")
    k.e(f"s_load_dwordx2 s[8:9], s[0:1], {KA_W1}")
    k.e(f"s_load_dwordx2 s[10:11], s[0:1], {KA_WS}")
    k.e("s_waitcnt lgkmcnt(0)")
    SRD_X, SRD_W, SRD_T = 12, 16, 20
    make_srd(k, SRD_X, 4, nrec=4 * MB)
    make_srd(k, SRD_T, 10, off_imm=WS_ST0, nrec=WS_END - WS_ST0)
    k.e(f"s_cmp_lt_u32 s2, {NQ}")
    k.e("s_cselect_b32 s16, s6, s8")
    k.e("s_cselect_b32 s17, s7, s9")
    k.e(f"s_mov_b32 s18, {1024 * 3584 * 2}")
    k.e(f"s_cselect_b32 s18, {1024 * 3072 * 2}, s18")
    k.e("s_and_b32 s17, s17, 0xffff")
    k.e(f"s_mov_b32 s19, {SRD3}")
    k.e(f"s_cmp_ge_u32 s2, {NCS}")
    k.e(f"s_cbranch_scc1 {L_st}")
    k.e(f"s_cmp_lt_u32 s2, {NQ}")
    k.e(f"s_cselect_b32 s24, 0, {NQ}")
    k.e(f"s_mov_b32 s25, {3584 * 2}")
    k.e(f"s_cselect_b32 s25, {3072 * 2}, s25")
    k.e(f"s_mov_b32 s26, {WS_CS1 - WS_ST0}")
    k.e(f"s_cselect_b32 s26, {WS_CSQ - WS_ST0}, s26")
    k.e("s_sub_u32 s24, s2, s24")
    k.e("s_and_b32 s27, s24, 3")
    k.e("s_lshr_b32 s24, s24, 2")
    k.e("v_and_b32 v1, 15, v0")
    k.e("v_lshrrev_b32 v2, 4, v0")
    k.e("s_lshl_b32 s28, s27, 8")
    k.e("v_add_u32 v3, s28, v2")
    k.e("v_mul_lo_u32 v3, v3, s25")
    k.e("v_lshl_add_u32 v3, v1, 4, v3")
    k.e("s_lshl_b32 s28, s24, 8")
    k.e("v_add_u32 v3, s28, v3")
    k.e("s_lshl_b32 s29, s25, 4")
    k.e("s_mov_b32 s28, 0")
    for i in range(16):
        k.e(f"buffer_load_dwordx4 {vr(16 + 4*i, 4)}, v3, s[{SRD_W}:{SRD_W+3}], s28 offen")
        k.e("s_add_u32 s28, s28, s29")
    for j in range(8):
        k.e(f"v_mov_b32 v{8+j}, 0")
    for i in range(16):
        k.e(f"s_waitcnt vmcnt({15 - i})")
        for j in range(4):
            k.e(f"v_lshlrev_b32 v4, 16, v{16 + 4*i + j}")
            k.e(f"v_and_b32 v5, 0xffff0000, v{16 + 4*i + j}")
            k.e(f"v_add_f32 v{8 + 2*j}, v{8 + 2*j}, v4")
            k.e(f"v_add_f32 v{9 + 2*j}, v{9 + 2*j}, v5")
    k.e("v_lshlrev_b32 v4, 9, v2")
    k.e("v_lshl_add_u32 v4, v1, 5, v4")
    k.e("ds_write_b128 v4, v[8:11]")
    k.e("ds_write_b128 v4, v[12:15] offset:16")
    k.e("s_waitcnt lgkmcnt(0)")
    k.e("s_barrier")
    k.e("v_cmp_gt_u32 vcc, 128, v0")
    k.e("s_and_saveexec_b64 s[30:31], vcc")
    k.e(f"s_cbranch_execz {L_end}")
    k.e("v_lshlrev_b32 v4, 2, v0")
    for i in range(16):
        k.e(f"ds_read_b32 v{16+i}, v4 offset:{i * 512}")
    k.e("s_waitcnt lgkmcnt(0)")
    for st in (8, 4, 2, 1):
        for i in range(st):
            k.e(f"v_add_f32 v{16+i}, v{16+i}, v{16+i+st}")
    k.e("s_lshl_b32 s28, s25, 1")
    k.e("s_mul_i32 s28, s28, s27")
    k.e("s_add_u32 s28, s28, s26")
    k.e("s_lshl_b32 s29, s24, 9")
    k.e("s_add_u32 s28, s28, s29")
    k.e(f"buffer_store_dword v16, v4, s[{SRD_T}:{SRD_T+3}], s28 offen")
    k.e("s_endpgm")
    k.label(L_st)
    k.e(f"s_sub_u32 s24, s2, {NCS}")
    k.e("s_lshl_b32 s28, s24, 15")
    k.e("v_lshlrev_b32 v1, 4, v0")
    for p in range(8):
        k.e(f"buffer_load_dwordx4 {vr(16 + 4*p, 4)}, v1, s[{SRD_X}:{SRD_X+3}], s28 offen")
        k.e("s_add_u32 s28, s28, 4096")
    k.e("v_lshrrev_b32 v2, 3, v0")
    k.e("v_lshlrev_b32 v2, 3, v2")
    k.e("v_and_b32 v3, 7, v0")
    k.e("v_cmp_eq_u32 s[30:31], 0, v3")
    k.e("s_lshl_b32 s28, s24, 11")
    for p in range(8):
        k.e(f"s_waitcnt vmcnt({7 - p})" if True else "")
        src = 16 + 4 * p
        for j in range(4):
            k.e(f"v_lshlrev_b32 v{48 + 2*j}, 16, v{src + j}")
            k.e(f"v_and_b32 v{49 + 2*j}, 0xffff0000, v{src + j}")
        k.e("v_add_f32 v4, v48, v49")
        k.e("v_add_f32 v5, v50, v51")
        k.e("v_add_f32 v6, v52, v53")
        k.e("v_add_f32 v7, v54, v55")
        k.e("v_add_f32 v4, v4, v5")
        k.e("v_add_f32 v6, v6, v7")
        k.e("v_add_f32 v4, v4, v6")

        def red8(r):
            k.e("s_nop 1")
            k.e(f"v_add_f32_dpp v{r}, v{r}, v{r} quad_perm:[1,0,3,2] row_mask:0xf bank_mask:0xf")
            k.e("s_nop 1")
            k.e(f"v_add_f32_dpp v{r}, v{r}, v{r} quad_perm:[2,3,0,1] row_mask:0xf bank_mask:0xf")
            k.e("s_nop 1")
            k.e(f"v_add_f32_dpp v{r}, v{r}, v{r} row_half_mirror row_mask:0xf bank_mask:0xf")
        red8(4)
        k.e(f"v_mul_f32 v8, {f32(1.0 / 64)}, v4")
        k.e("v_mov_b32 v9, 0")
        for j in range(8):
            k.e(f"v_sub_f32 v{48+j}, v{48+j}, v8")
            k.e(f"v_fmac_f32 v9, v{48+j}, v{48+j}")
        red8(9)
        k.e("s_mov_b64 exec, s[30:31]")
        k.e(f"buffer_store_dwordx2 v[8:9], v2, s[{SRD_T}:{SRD_T+3}], s28 offen offset:{p * 256}")
        k.e("s_mov_b64 exec, -1")
        k.e("s_nop 0")
    k.label(L_end)
    k.e("s_endpgm")
    return k.text(), 80, 8192, NCS + NST


def build(opts=None, launches=None):
    opts = opts or {}
    code = []
    descs = []
    info = {}
    t, v, lds, grid = gen_prep()
    code.append(header("prep_kernel") + t)
    descs.append(desc("prep_kernel", v))
    info["prep_kernel"] = (grid, 256, lds)
    for kind in ("qkv", "wo", "w1", "w2"):
        t, v, lds = gen_gemm(kind, opts.get(kind))
        if kind in ("qkv", "wo"):
            for sfx, ka in (("a", KA_X), ("b", KA_OUT)):
                nm = f"{kind}_{sfx}_kernel"
                code.append(header(nm) + f"    s_load_dwordx2 s[4:5], s[0:1], {ka}\n    s_branch {kind}_body\n")
                descs.append(desc(nm, v))
                info[nm] = (256, 512, lds)
            code.append(".p2align 8\n" + t)
        else:
            nm = f"{kind}_kernel"
            code.append(header(nm) + t)
            descs.append(desc(nm, v))
            info[nm] = (256, 512, lds)
    t, v, lds = gen_attn(opts.get("attn"))
    code.append(header("attn_kernel") + t)
    descs.append(desc("attn_kernel", v))
    info["attn_kernel"] = (256, 512, lds)
    if launches is None:
        launches = ["prep_kernel", "qkv_a_kernel", "attn_kernel", "wo_a_kernel", "w1_kernel", "w2_kernel",
                    "qkv_b_kernel", "attn_kernel", "wo_b_kernel", "w1_kernel", "w2_kernel"]
    hdr = "; generated by work/gen.py -- LN-folded GEMMs (LDS-DMA ring, loader/compute waves) + flash attention\n"
    for l in launches:
        g, b, lds = info[l]
        hdr += f"; @launch kernel={l} grid=({g},1,1) block=({b},1,1) lds={lds}\n"
    out = hdr + '.amdgcn_target "amdgcn-amd-amdhsa--gfx950"\n.text\n' + "".join(code)
    out += '.section .rodata,"a"\n' + "".join(descs)
    return out


if __name__ == "__main__":
    path = sys.argv[1] if len(sys.argv) > 1 else f"cdna_kernels/{NAME}.s"
    open(path, "w").write(build())
    print("wrote", path)
```

```python
import math
import sys

NAME = "interleave_layers__mha_block__mixer_channel_mlp__prompt"
S_TOK, D, F, NH = 2048, 1024, 3584, 32
EPS = 1e-5

KA_X, KA_WQKV, KA_WO, KA_BX, KA_W1, KA_B1, KA_W2, KA_B2, KA_OUT, KA_DBG, KA_WS = [8 * i for i in range(11)]

MB = 1 << 20
WS_QF = 0
WS_KF = 4 * MB
WS_VF = 8 * MB
WS_O = 12 * MB
WS_X1 = 16 * MB
WS_H = 20 * MB
WS_ST0 = 36 * MB
WS_ST1 = WS_ST0 + 256 * 1024
WS_CSQ = 37 * MB
WS_CS1 = WS_CSQ + 256 * 1024
WS_END = 38 * MB

SRD3 = 0x00020000


def f32(x):
    import struct
    return "0x%08x" % struct.unpack("<I", struct.pack("<f", x))[0]


class Kern:
    def __init__(self, name):
        self.name = name
        self.lines = []
        self.maxv = 0
        self.uid = 0

    def e(self, s):
        self.lines.append("    " + s)

    def c(self, s):
        self.lines.append("    ; " + s)

    def label(self, l):
        self.lines.append(l + ":")

    def newlabel(self, p):
        self.uid += 1
        return "L_%s_%s%d" % (self.name, p, self.uid)

    def text(self):
        return "\n".join(self.lines) + "\n"


def vr(b, n=1):
    return "v%d" % b if n == 1 else "v[%d:%d]" % (b, b + n - 1)


def sr(b, n=1):
    return "s%d" % b if n == 1 else "s[%d:%d]" % (b, b + n - 1)


def header(name):
    return f""".globl {name}
.p2align 8
.type {name},@function
{name}:
"""


def desc(name, vgpr, sgpr=96):
    vg = (vgpr + 7) // 8 * 8
    return f""".p2align 6
.amdhsa_kernel {name}
  .amdhsa_next_free_vgpr {vg}
  .amdhsa_next_free_sgpr {sgpr}
  .amdhsa_accum_offset {vg}
  .amdhsa_group_segment_fixed_size 0
  .amdhsa_kernarg_size 88
  .amdhsa_user_sgpr_count 2
  .amdhsa_user_sgpr_kernarg_segment_ptr 1
  .amdhsa_system_sgpr_workgroup_id_x 1
  .amdhsa_float_denorm_mode_32 3
.end_amdhsa_kernel
"""


TIMING = False

def t_start(k, s0=90):
    if TIMING:
        k.e(f"s_memtime s[{s0}:{s0+1}]")
        k.e(f"s_memrealtime s[{s0+2}:{s0+3}]")
        for i in range(4):
            k.e(f"s_mov_b32 s{72+2*i}, 0")

def t_mark(k, i):
    if TIMING:
        k.e(f"s_memtime s[{72+2*i}:{73+2*i}]")
        k.e("s_waitcnt lgkmcnt(0)")

def t_end(k, s0=90, slot_sgpr=None):
    if TIMING:
        k.e("s_waitcnt vmcnt(0) lgkmcnt(0)")
        k.e(f"s_memtime s[84:85]")
        k.e(f"s_memrealtime s[86:87]")
        k.e(f"s_load_dwordx2 s[80:81], s[0:1], {KA_WS}")
        k.e(f"s_load_dwordx2 s[88:89], s[0:1], {KA_DBG}")
        k.e("s_waitcnt lgkmcnt(0)")
        k.e(f"s_sub_u32 s84, s84, s{s0}")
        for i in range(4):
            k.e(f"s_sub_u32 s{72+2*i}, s{72+2*i}, s{s0}")
        k.e("s_and_b32 s81, s81, 0xffff")
        k.e("s_mov_b32 s82, 0x10000000")
        k.e(f"s_mov_b32 s83, {SRD3}")
        k.e("v_mov_b32 v4, s84")
        k.e(f"v_mov_b32 v5, s{s0+2}")
        k.e("v_mov_b32 v6, s86")
        k.e("v_mov_b32 v7, s2")
        for i in range(4):
            k.e(f"v_mov_b32 v{8+i}, s{72+2*i}")
        k.e("s_lshr_b32 s88, s88, 9")
        k.e("s_and_b32 s88, s88, 31")
        k.e("s_lshl_b32 s88, s88, 17")
        k.e("s_lshl_b32 s89, s2, 8")
        k.e("s_add_u32 s88, s88, s89")
        k.e(f"s_lshl_b32 s89, s{slot_sgpr}, 5")
        k.e("s_add_u32 s88, s88, s89")
        k.e(f"s_add_u32 s88, s88, {64 * MB}")
        k.e("v_mov_b32 v1, s88")
        k.e("s_mov_b64 exec, 1")
        k.e("buffer_store_dwordx4 v[4:7], v1, s[80:83], 0 offen")
        k.e("buffer_store_dwordx4 v[8:11], v1, s[80:83], 0 offen offset:16")
        k.e("s_waitcnt vmcnt(0)")

def make_srd(k, dst, ptr, off_sgpr=None, off_imm=0, nrec=0):
    if off_sgpr is None and off_imm == 0:
        k.e(f"s_mov_b32 s{dst}, s{ptr}")
        k.e(f"s_and_b32 s{dst+1}, s{ptr+1}, 0xffff")
    else:
        if off_sgpr is not None:
            k.e(f"s_add_u32 s{dst}, s{ptr}, s{off_sgpr}")
            k.e(f"s_addc_u32 s{dst+1}, s{ptr+1}, 0")
            if off_imm:
                k.e(f"s_add_u32 s{dst}, s{dst}, {off_imm}")
                k.e(f"s_addc_u32 s{dst+1}, s{dst+1}, 0")
        else:
            k.e(f"s_add_u32 s{dst}, s{ptr}, {off_imm}")
            k.e(f"s_addc_u32 s{dst+1}, s{ptr+1}, 0")
        k.e(f"s_and_b32 s{dst+1}, s{dst+1}, 0xffff")
    k.e(f"s_mov_b32 s{dst+2}, {nrec}")
    k.e(f"s_mov_b32 s{dst+3}, {SRD3}")


GEMM_CFG = {
    "qkv": dict(K=1024, N=3072, lda=1024, NSEG=3, HALF=False, S=4),
    "wo": dict(K=1024, N=1024, lda=1024, NSEG=1, HALF=False, S=6),
    "w1": dict(K=1024, N=3584, lda=1024, NSEG=3, HALF=True, S=3),
    "w2": dict(K=3584, N=1024, lda=3584, NSEG=1, HALF=False, S=6),
}
BIGOFF = 0x7ff00000


def touch_geom(kind):
    c = GEMM_CFG[kind]
    R = 4 if c["NSEG"] == 3 else 8
    return R, c["K"] // 64 // R


def w_touch_voff(k, kind, vd, va, vb, s_sub, sa, sb):
    c = GEMM_CFG[kind]
    ldw2 = c["N"] * 2
    k.e(f"s_lshr_b32 s{sa}, s2, 3")
    k.e(f"s_and_b32 s{sa}, s{sa}, 31")
    k.e(f"s_lshl_b32 s{sa}, s{sa}, 1")
    if c["NSEG"] == 3:
        k.e(f"s_lshl_b32 s{sb}, s{s_sub}, 7")
        k.e(f"s_add_u32 s{sa}, s{sa}, s{sb}")
        k.e(f"v_lshrrev_b32 v{va}, 5, v0")
        k.e(f"v_lshlrev_b32 v{va}, 6, v{va}")
        k.e(f"v_bfe_u32 v{vb}, v0, 4, 1")
        k.e(f"v_add3_u32 v{va}, v{va}, v{vb}, s{sa}")
        k.e(f"v_mul_u32_u24 v{vd}, {ldw2}, v{va}")
        k.e(f"s_and_b32 s{sa}, s2, 7")
        k.e(f"s_lshr_b32 s{sa}, s{sa}, 1")
        k.e(f"v_and_b32 v{va}, 15, v0")
        if kind == "qkv":
            k.e(f"s_lshl_b32 s{sa}, s{sa}, 9")
            k.e(f"v_lshrrev_b32 v{vb}, 2, v{va}")
            k.e(f"v_lshl_add_u32 v{vd}, v{vb}, 11, v{vd}")
            k.e(f"v_and_b32 v{vb}, 3, v{va}")
            k.e(f"v_lshl_add_u32 v{vd}, v{vb}, 7, v{vd}")
            k.e(f"v_add_u32 v{vd}, s{sa}, v{vd}")
            k.e(f"v_cmp_gt_u32 vcc, 12, v{va}")
        else:
            k.e(f"s_mul_i32 s{sb}, s{sa}, 1536")
            k.e(f"s_lshl_b32 s{sa}, s{sa}, 8")
            k.e(f"s_add_u32 s{sa}, s{sa}, {6144 - 12 * 128}")
            k.e(f"v_mov_b32 v{vb}, s{sb}")
            k.e(f"v_cmp_gt_u32 vcc, 12, v{va}")
            k.e(f"v_lshl_add_u32 v{vd}, v{va}, 7, v{vd}")
            k.e(f"v_mov_b32 v{va}, s{sa}")
            k.e(f"v_cndmask_b32 v{vb}, v{va}, v{vb}, vcc")
            k.e(f"v_add_u32 v{vd}, v{vd}, v{vb}")
            k.e(f"v_and_b32 v{va}, 15, v0")
            k.e(f"v_cmp_gt_u32 vcc, 14, v{va}")
        k.e(f"v_mov_b32 v{vb}, {BIGOFF}")
        k.e("s_nop 0")
        k.e(f"v_cndmask_b32 v{vd}, v{vb}, v{vd}, vcc")
    else:
        k.e(f"s_lshl_b32 s{sb}, s{s_sub}, 8")
        k.e(f"s_add_u32 s{sa}, s{sa}, s{sb}")
        k.e(f"v_lshrrev_b32 v{va}, 4, v0")
        k.e(f"v_lshlrev_b32 v{va}, 6, v{va}")
        k.e(f"v_bfe_u32 v{vb}, v0, 3, 1")
        k.e(f"v_add3_u32 v{va}, v{va}, v{vb}, s{sa}")
        k.e(f"v_mul_u32_u24 v{vd}, {ldw2}, v{va}")
        k.e(f"s_and_b32 s{sa}, s2, 7")
        k.e(f"s_lshr_b32 s{sa}, s{sa}, 2")
        k.e(f"s_lshl_b32 s{sa}, s{sa}, 10")
        k.e(f"v_and_b32 v{va}, 7, v0")
        k.e(f"v_lshl_add_u32 v{vd}, v{va}, 7, v{vd}")
        k.e(f"v_add_u32 v{vd}, s{sa}, v{vd}")


def x_touch_voff(k, kind, vd, va, vb, s_sub, sa, sb):
    c = GEMM_CFG[kind]
    lda2 = c["lda"] * 2
    k.e(f"s_lshr_b32 s{sa}, s2, 3")
    k.e(f"s_and_b32 s{sa}, s{sa}, 31")
    if c["NSEG"] == 3:
        k.e(f"s_lshl_b32 s{sa}, s{sa}, 5")
        k.e(f"s_and_b32 s{sb}, s2, 1")
        k.e(f"s_lshl_b32 s{sb}, s{sb}, 10")
        k.e(f"s_add_u32 s{sa}, s{sa}, s{sb}")
        k.e(f"v_and_b32 v{va}, 31, v0")
        k.e(f"v_lshrrev_b32 v{vb}, 5, v0")
        k.e(f"s_lshl_b32 s{sb}, s{s_sub}, 8")
    else:
        k.e(f"s_lshl_b32 s{sa}, s{sa}, 4")
        k.e(f"s_and_b32 s{sb}, s2, 3")
        k.e(f"s_lshl_b32 s{sb}, s{sb}, 9")
        k.e(f"s_add_u32 s{sa}, s{sa}, s{sb}")
        k.e(f"v_and_b32 v{va}, 15, v0")
        k.e(f"v_lshrrev_b32 v{vb}, 4, v0")
        k.e(f"s_lshl_b32 s{sb}, s{s_sub}, 9")
    k.e(f"v_add_u32 v{va}, s{sa}, v{va}")
    k.e(f"v_mul_u32_u24 v{vd}, {lda2}, v{va}")
    k.e(f"v_lshl_add_u32 v{vd}, v{vb}, 7, v{vd}")
    k.e(f"v_add_u32 v{vd}, s{sb}, v{vd}")


def next_w_prefetch(k, target, srd, s_w4, nrounds, vd, va, vb, vdummy, sa, sb, sc):
    R, tot = touch_geom(target)
    ldw2 = GEMM_CFG[target]["N"] * 2
    step = R * 64 * ldw2
    k.e(f"s_and_b32 s{sc}, s{s_w4}, 1")
    w_touch_voff(k, target, vd, va, vb, sc, sa, sb)
    k.e(f"s_lshr_b32 s{sa}, s{s_w4}, 1")
    k.e(f"s_mul_i32 s{sa}, s{sa}, {step}")
    for r in range(0, nrounds, 2):
        k.e(f"buffer_load_dword v{vdummy}, v{vd}, s[{srd}:{srd+3}], s{sa} offen")
        if r + 2 < nrounds:
            k.e(f"s_add_u32 s{sa}, s{sa}, {2 * step}")


def slow_prefetch(k, target, srd, s_w4, vd, va, vdummy, sa, sb, k0=0, k1=None):
    c = GEMM_CFG[target]
    ldw2 = c["N"] * 2
    if k1 is None:
        k1 = c["K"]
    rows = k1 - k0
    k.e(f"s_lshr_b32 s{sa}, s2, 3")
    k.e(f"s_and_b32 s{sa}, s{sa}, 31")
    k.e(f"s_and_b32 s{sb}, s2, 7")
    if c["NSEG"] == 1:
        per = rows // 32
        assert per <= 128
        k.e(f"s_mul_i32 s{sa}, s{sa}, {per}")
        k.e(f"s_lshr_b32 s{sb}, s{sb}, 2")
        k.e(f"s_lshl_b32 s{sb}, s{sb}, 10")
        k.e(f"s_add_u32 s{sb}, s{sb}, {384 + k0 * ldw2}")
        k.e(f"v_lshl_add_u32 v{va}, s{s_w4}, 6, v0")
        k.e(f"v_cmp_gt_u32 vcc, {per}, v{va}")
        k.e(f"v_add_u32 v{va}, s{sa}, v{va}")
        k.e(f"v_mul_u32_u24 v{vd}, {ldw2}, v{va}")
        k.e(f"v_add_u32 v{vd}, s{sb}, v{vd}")
    elif target == "qkv":
        k.e(f"s_lshl_b32 s{sa}, s{sa}, 5")
        k.e(f"v_add_u32 v{va}, s{sa}, v0")
        k.e(f"v_mul_u32_u24 v{vd}, {ldw2}, v{va}")
        k.e(f"s_lshr_b32 s{sb}, s{sb}, 1")
        k.e(f"s_lshl_b32 s{sa}, s{sb}, 9")
        k.e(f"s_add_u32 s{sa}, s{sa}, 384")
        k.e(f"v_add_u32 v{vd}, s{sa}, v{vd}")
        k.e(f"s_lshl_b32 s{sa}, s{s_w4}, 11")
        k.e(f"v_add_u32 v{vd}, s{sa}, v{vd}")
        k.e(f"s_and_b32 s{sb}, s{sb}, 1")
        k.e(f"s_cmp_eq_u32 s{s_w4}, 3")
        k.e(f"s_cselect_b32 s{sb}, 1, s{sb}")
        k.e(f"s_cmp_eq_u32 s{sb}, 0")
        k.e(f"s_cselect_b32 s{sb}, 32, 0")
        k.e(f"v_cmp_gt_u32 vcc, s{sb}, v0")
    else:
        k.e(f"s_lshl_b32 s{sa}, s{sa}, 5")
        k.e(f"v_and_b32 v{va}, 31, v0")
        k.e(f"v_add_u32 v{va}, s{sa}, v{va}")
        k.e(f"v_mul_u32_u24 v{vd}, {ldw2}, v{va}")
        k.e(f"s_lshr_b32 s{sb}, s{sb}, 1")
        k.e(f"s_mul_i32 s{sa}, s{sb}, {12 * 128}")
        k.e(f"s_bitcmp1_b32 s{sb}, 0")
        k.e(f"s_cselect_b32 s{sb}, {7 * 128}, {3 * 128}" if False else f"s_cselect_b32 s{sb}, 7, 3")
        k.e(f"s_lshl_b32 s{sb}, s{sb}, 7")
        k.e(f"s_add_u32 s{sa}, s{sa}, s{sb}")
        k.e(f"v_add_u32 v{vd}, s{sa}, v{vd}")
        k.e(f"s_sub_u32 s{sb}, {51 * 128}, s{sa}")
        k.e(f"s_and_b32 s{sa}, s2, 2")
        k.e(f"s_cmp_eq_u32 s{sa}, 0")
        k.e(f"s_cselect_b32 s{sb}, 1024, s{sb}")
        k.e(f"v_lshrrev_b32 v{va}, 5, v0")
        k.e(f"v_mul_lo_u32 v{va}, v{va}, s{sb}")
        k.e(f"v_add_u32 v{vd}, v{vd}, v{va}")
        k.e(f"s_cmp_eq_u32 s{s_w4}, 0")
        k.e(f"s_cselect_b32 s{sb}, 64, 0")
        k.e(f"v_cmp_gt_u32 vcc, s{sb}, v0")
    k.e(f"v_mov_b32 v{va}, {BIGOFF}")
    k.e("s_nop 0")
    k.e(f"v_cndmask_b32 v{vd}, v{va}, v{vd}, vcc")
    k.e(f"buffer_load_dword v{vdummy}, v{vd}, s[{srd}:{srd+3}], 0 offen")


def gen_gemm(kind, opts=None):
    opts = opts or {}
    cfg = dict(GEMM_CFG[kind])
    cfg.update(opts)
    K, N, lda, NSEG, HALF, S = cfg["K"], cfg["N"], cfg["lda"], cfg["NSEG"], cfg["HALF"], cfg["S"]
    no_compute = cfg.get("no_compute", False)
    no_dma = cfg.get("no_dma", False)
    no_reads = cfg.get("no_reads", False)
    STFLAG = cfg.get("stflag", "")
    if STFLAG:
        STFLAG = " " + STFLAG
    BK = 64
    NS = K // BK
    lda2, ldw2 = lda * 2, N * 2
    XB = 16384
    WB = NSEG * 8192 + (4096 if HALF else 0)
    STAGE = XB + WB
    LDS = STAGE * S
    assert LDS <= 163840
    NB = 2 * NSEG + (1 if HALF else 0)
    P = 4 + 2 * NSEG + (1 if HALF else 0)
    name = kind + "_body"
    k = Kern(kind)
    L_end = f"L_{kind}_end"
    L_loader = f"L_{kind}_loader"

    sXP = 4
    sWP = 6
    sWS = 30
    sOP = 32
    sBP = 34
    SRD_A, SRD_W, SRD_O, SRD_R, SRD_T, SRD_B = 8, 12, 16, 20, 24, 36
    sWave, sMT, sNT, sT0, sT1, sRing, sCnt, sKx, sKw, sRx, sRw = range(40, 51)

    k.label(name)
    k.e("s_cmp_ge_u32 s2, 256")
    k.e(f"s_cbranch_scc1 {L_end}")
    t_start(k)
    wka = {"qkv": KA_WQKV, "wo": KA_WO, "w1": KA_W1, "w2": KA_W2}[kind]
    k.e(f"s_load_dwordx2 s[{sWP}:{sWP+1}], s[0:1], {wka}")
    k.e(f"s_load_dwordx2 s[{sWS}:{sWS+1}], s[0:1], {KA_WS}")
    k.e(f"s_load_dwordx2 s[{sOP}:{sOP+1}], s[0:1], {KA_OUT}")
    k.e(f"s_load_dwordx2 s[{sBP}:{sBP+1}], s[0:1], {KA_B1 if kind == 'w1' else KA_B2}")
    k.e("v_lshrrev_b32 v1, 6, v0")
    k.e("v_and_b32 v0, 63, v0")
    k.e(f"v_readfirstlane_b32 s{sWave}, v1")
    k.e(f"s_and_b32 s{sT0}, s2, 7")
    k.e(f"s_lshr_b32 s{sT1}, s2, 3")
    if NSEG == 3:
        k.e(f"s_and_b32 s{sMT}, s{sT0}, 1")
        k.e(f"s_lshl_b32 s{sMT}, s{sMT}, 3")
        k.e(f"s_and_b32 s{sNT}, s{sT1}, 7")
        k.e(f"s_add_u32 s{sMT}, s{sMT}, s{sNT}")
        k.e(f"s_lshr_b32 s{sNT}, s{sT0}, 1")
        k.e(f"s_lshl_b32 s{sNT}, s{sNT}, 2")
        k.e(f"s_lshr_b32 s{sT1}, s{sT1}, 3")
        k.e(f"s_add_u32 s{sNT}, s{sNT}, s{sT1}")
    else:
        k.e(f"s_and_b32 s{sMT}, s{sT0}, 3")
        k.e(f"s_lshl_b32 s{sMT}, s{sMT}, 2")
        k.e(f"s_and_b32 s{sNT}, s{sT1}, 3")
        k.e(f"s_add_u32 s{sMT}, s{sMT}, s{sNT}")
        k.e(f"s_lshr_b32 s{sNT}, s{sT0}, 2")
        k.e(f"s_lshl_b32 s{sNT}, s{sNT}, 3")
        k.e(f"s_lshr_b32 s{sT1}, s{sT1}, 2")
        k.e(f"s_add_u32 s{sNT}, s{sNT}, s{sT1}")
    nxt = {"qkv": None, "wo": "w1", "w1": "w2", "w2": "qkv"}[kind]
    sNP = 56
    SRD_N, SRD_PF = 60, 64
    if nxt:
        k.e(f"s_load_dwordx2 s[{sNP}:{sNP+1}], s[0:1], {dict(qkv=KA_WQKV, w1=KA_W1, w2=KA_W2)[nxt]}")
    aoff = {"qkv": 0, "wo": WS_O, "w1": WS_X1, "w2": WS_H}[kind]
    aptr = sXP if kind == "qkv" else sWS

    def srds_loader():
        k.e("s_waitcnt lgkmcnt(0)")
        k.e(f"s_mul_i32 s{sT0}, s{sMT}, {128 * lda2}")
        make_srd(k, SRD_A, aptr, off_sgpr=sT0, off_imm=aoff, nrec=128 * lda2)
        make_srd(k, SRD_W, sWP, nrec=K * N * 2)

    def srds_tables():
        make_srd(k, SRD_T, sWS, off_imm=WS_ST0, nrec=WS_END - WS_ST0)
        make_srd(k, SRD_B, sBP, nrec=(F if kind == "w1" else D) * 2)

    def srds_compute():
        if kind == "qkv":
            make_srd(k, SRD_O, sWS, nrec=12 * MB)
        elif kind == "wo":
            make_srd(k, SRD_O, sWS, off_imm=WS_X1, nrec=4 * MB)
        elif kind == "w1":
            make_srd(k, SRD_O, sWS, off_imm=WS_H, nrec=S_TOK * F * 2)
        else:
            make_srd(k, SRD_O, sOP, nrec=4 * MB)
        if kind == "wo":
            make_srd(k, SRD_R, sXP, nrec=4 * MB)
        elif kind == "w2":
            make_srd(k, SRD_R, sWS, off_imm=WS_X1, nrec=4 * MB)
        srds_tables()

    k.e(f"s_cmp_ge_u32 s{sWave}, 4")
    k.e(f"s_cbranch_scc1 {L_loader}")

    TBL = 0 if (NS - 1) % S != 0 else STAGE
    T_AB = TBL
    T_CS = TBL + 1024
    T_B1 = TBL + 2048
    T_ST = TBL + 4096

    vC, vG, vT0, vT1, vT2, vT3 = 1, 2, 3, 4, 5, 6
    bX0, bX1, bW0, bW1, bH = 7, 8, 9, 10, 11
    aX0, aX1, aW0, aW1, aH = 12, 13, 14, 15, 16
    ACC = 20
    FR = ACC + 16 * NB
    FSZ = 16 + 4 * NB
    DEEP = cfg.get("deep", NSEG == 1)
    VEND = FR + (4 if DEEP else 2) * FSZ

    def acc(tb, blk):
        return ACC + (tb * NB + blk) * 4

    def fx(st, tb):
        return FR + st * FSZ + tb * 4

    def fw(st, blk):
        return FR + st * FSZ + 16 + blk * 4

    sWM, sWN = 51, 52
    k.c("compute wave")
    k.e(f"s_lshr_b32 s{sWM}, s{sWave}, 1")
    k.e(f"s_and_b32 s{sWN}, s{sWave}, 1")
    k.e(f"v_and_b32 v{vC}, 15, v0")
    k.e(f"v_lshrrev_b32 v{vG}, 4, v0")
    k.e(f"v_lshrrev_b32 v{vT0}, 1, v{vC}")
    k.e(f"v_xor_b32 v{vT0}, v{vT0}, v{vG}")
    k.e(f"v_lshlrev_b32 v{vT0}, 4, v{vT0}")
    k.e(f"v_lshl_add_u32 v{bX0}, v{vC}, 7, v{vT0}")
    k.e(f"s_lshl_b32 s{sT0}, s{sWM}, 13")
    k.e(f"v_add_u32 v{bX0}, s{sT0}, v{bX0}")
    k.e(f"v_xor_b32 v{bX1}, 64, v{bX0}")
    k.e(f"v_lshrrev_b32 v{vT0}, 2, v{vC}")
    k.e(f"v_and_b32 v{vT1}, 3, v{vC}")
    k.e(f"v_lshlrev_b32 v{vT0}, 6, v{vT0}")
    k.e(f"v_lshl_add_u32 v{vT0}, v{vT1}, 3, v{vT0}")
    k.e(f"v_and_b32 v{vT1}, 1, v{vG}")
    k.e(f"v_lshl_add_u32 v{vT2}, v{vT1}, 5, v{vT0}")
    k.e(f"v_mul_u32_u24 v{vT3}, {NSEG * 1024}, v{vG}")
    k.e(f"v_add_u32 v{bW0}, v{vT2}, v{vT3}")
    k.e(f"s_lshl_b32 s{sT0}, s{sWN}, 8")
    k.e(f"s_add_u32 s{sT0}, s{sT0}, {XB}")
    k.e(f"v_add_u32 v{bW0}, s{sT0}, v{bW0}")
    k.e(f"v_xor_b32 v{bW1}, 32, v{bW0}")
    if HALF:
        k.e(f"v_xor_b32 v{vT1}, s{sWN}, v{vT1}")
        k.e(f"v_lshl_add_u32 v{vT2}, v{vT1}, 5, v{vT0}")
        k.e(f"v_lshl_add_u32 v{bH}, v{vG}, 9, v{vT2}")
        k.e(f"v_add_u32 v{bH}, {XB + 8 * NSEG * 1024}, v{bH}")

    vPF, vPD = 17, 18
    sPFo, sPFs, sPFc = 53, 54, 55
    RST, RTOT = touch_geom(kind)
    IR = min(cfg.get("IR", 2), RTOT)
    do_touch = cfg.get("touch", False)
    if do_touch:
        L_wt = f"L_{kind}_wt"
        L_td = f"L_{kind}_td"
        k.e(f"s_cmp_ge_u32 s{sWave}, 2")
        k.e(f"s_cbranch_scc1 {L_wt}")
        x_touch_voff(k, kind, vPF, vT0, vT1, sWN, sT0, sT1)
        k.e("s_waitcnt lgkmcnt(0)")
        make_srd(k, SRD_PF, aptr, off_imm=aoff, nrec=S_TOK * lda2)
        k.e(f"s_mov_b32 s{sPFs}, {RST * 128}")
        k.e(f"s_branch {L_td}")
        k.label(L_wt)
        w_touch_voff(k, kind, vPF, vT0, vT1, sWN, sT0, sT1)
        k.e("s_waitcnt lgkmcnt(0)")
        make_srd(k, SRD_PF, sWP, nrec=K * N * 2)
        k.e(f"s_mov_b32 s{sPFs}, {RST * 64 * ldw2}")
        k.label(L_td)
        k.e(f"s_mov_b32 s{sPFo}, 0")
        for r in range(IR):
            k.e(f"buffer_load_dword v{vPD}, v{vPF}, s[{SRD_PF}:{SRD_PF+3}], s{sPFo} offen")
            k.e(f"s_add_u32 s{sPFo}, s{sPFo}, s{sPFs}")
        k.e(f"s_mov_b32 s{sPFc}, {RST * (RTOT - IR)}")
    else:
        k.e("s_waitcnt lgkmcnt(0)")
    srds_compute()

    def loop_touch():
        if not do_touch or RTOT == IR:
            return
        l = k.newlabel("nt")
        k.e(f"s_sub_u32 s{sPFc}, s{sPFc}, 1")
        k.e(f"s_cbranch_scc1 {l}")
        k.e(f"s_and_b32 s{sT0}, s{sPFc}, {RST - 1}")
        k.e(f"s_cmp_lg_u32 s{sT0}, {RST - 1}")
        k.e(f"s_cbranch_scc1 {l}2")
        k.e(f"buffer_load_dword v{vPD}, v{vPF}, s[{SRD_PF}:{SRD_PF+3}], s{sPFo} offen")
        k.e(f"s_add_u32 s{sPFo}, s{sPFo}, s{sPFs}")
        k.e(f"s_branch {l}2")
        k.label(l)
        k.e(f"s_mov_b32 s{sPFc}, 0")
        k.label(l + "2")

    if kind in ("wo", "w2"):
        vRO = vT0
        k.e(f"s_lshl_b32 s{sT0}, s{sMT}, 7")
        k.e(f"s_lshl_b32 s{sT1}, s{sWM}, 6")
        k.e(f"s_add_u32 s{sT0}, s{sT0}, s{sT1}")
        k.e(f"v_add_u32 v{vT1}, s{sT0}, v{vC}")
        k.e(f"v_lshlrev_b32 v{vT1}, 11, v{vT1}")
        k.e(f"s_lshl_b32 s{sT0}, s{sNT}, 7")
        k.e(f"s_lshl_b32 s{sT1}, s{sWN}, 6")
        k.e(f"s_add_u32 s{sT0}, s{sT0}, s{sT1}")
        k.e(f"v_lshl_add_u32 v{vT2}, v{vG}, 3, s{sT0}")
        k.e(f"v_add_u32 v{vRO}, v{vT1}, v{vT2}")
        RT = VEND
        BT = RT + 16
        BF = BT + 4
        RF = BF + 8
        VEND = RF + 32
        vRA, vBA = VEND, VEND + 1
        VEND += 2
        k.e(f"v_mov_b32 v{vRA}, v{vRO}")
        k.e(f"v_mov_b32 v{vBA}, v{vT2}")
        resload = []
        for tb in range(4):
            resload.append(f"s_mov_b32 s{sT1}, {tb * 16 * 2048}")
            for b in range(2):
                resload.append(f"buffer_load_dwordx2 {vr(RT + (tb * 2 + b) * 2, 2)}, v{vRA}, s[{SRD_R}:{SRD_R+3}], s{sT1} offen offset:{b * 32}")
        if kind == "w2":
            for b in range(2):
                resload.append(f"buffer_load_dwordx2 {vr(BT + b * 2, 2)}, v{vBA}, s[{SRD_B}:{SRD_B+3}], 0 offen offset:{b * 32}")
        if not DEEP:
            for x in resload:
                k.e(x)
        unpack = ["s_waitcnt vmcnt(0)"]
        if kind == "w2":
            for b in range(2):
                for j in range(2):
                    unpack.append(f"v_lshlrev_b32 v{BF + b*4 + 2*j}, 16, v{BT + b*2 + j}")
                    unpack.append(f"v_and_b32 v{BF + b*4 + 2*j + 1}, 0xffff0000, v{BT + b*2 + j}")
        for tb in range(4):
            for b in range(2):
                for j in range(2):
                    src = RT + (tb * 2 + b) * 2 + j
                    d0 = RF + (tb * 2 + b) * 4 + 2 * j
                    unpack.append(f"v_lshlrev_b32 v{d0}, 16, v{src}")
                    unpack.append(f"v_and_b32 v{d0+1}, 0xffff0000, v{src}")
                    if kind == "w2":
                        unpack.append(f"v_add_f32 v{d0}, v{d0}, v{BF + b*4 + 2*j}")
                        unpack.append(f"v_add_f32 v{d0+1}, v{d0+1}, v{BF + b*4 + 2*j + 1}")
    for i in range(16 * NB):
        k.e(f"v_mov_b32 v{ACC + i}, 0")

    def set_addr():
        k.e(f"v_add_u32 v{aX0}, s{sRing}, v{bX0}")
        k.e(f"v_add_u32 v{aX1}, s{sRing}, v{bX1}")
        k.e(f"v_add_u32 v{aW0}, s{sRing}, v{bW0}")
        k.e(f"v_add_u32 v{aW1}, s{sRing}, v{bW1}")
        if HALF:
            k.e(f"v_add_u32 v{aH}, s{sRing}, v{bH}")

    def reads(st, kk):
        r = []
        ax = aX0 if kk == 0 else aX1
        xs = [f"ds_read_b128 {vr(fx(st, tb), 4)}, v{ax} offset:{tb * 2048}" for tb in range(4)]
        ws = []
        for seg in range(NSEG):
            for b in range(2):
                aw = aW0 if b == 0 else aW1
                for sec in range(2):
                    off = (4 * kk * NSEG + seg) * 1024 + sec * 512
                    ws.append(f"ds_read_b64_tr_b16 {vr(fw(st, seg * 2 + b) + 2 * sec, 2)}, v{aw} offset:{off}")
        if HALF:
            for sec in range(2):
                ws.append(f"ds_read_b64_tr_b16 {vr(fw(st, 2 * NSEG) + 2 * sec, 2)}, v{aH} offset:{kk * 2048 + sec * 256}")
        r = [xs[0]] + ws[:4] + xs[1:] + ws[4:]
        if no_reads:
            r = r[:1]
        return r

    def mfmas(st):
        m = []
        for blk in range(NB):
            for tb in range(4):
                a = acc(tb, blk)
                swapped = (kind == "qkv" and blk >= 4)
                if swapped:
                    m.append(f"v_mfma_f32_16x16x32_bf16 {vr(a, 4)}, {vr(fx(st, tb), 4)}, {vr(fw(st, blk), 4)}, {vr(a, 4)}")
                else:
                    m.append(f"v_mfma_f32_16x16x32_bf16 {vr(a, 4)}, {vr(fw(st, blk), 4)}, {vr(fx(st, tb), 4)}, {vr(a, 4)}")
        if no_compute:
            m = m[:1]
        return m

    def interleave(m, r):
        out = []
        i = j = 0
        while i < len(m) or j < len(r):
            if i < len(m):
                out.append(m[i]); i += 1
            if j < len(r):
                out.append(r[j]); j += 1
        for x in out:
            k.e(x)

    def ring_adv():
        k.e(f"s_add_u32 s{sRing}, s{sRing}, {STAGE}")
        k.e(f"s_cmp_eq_u32 s{sRing}, {LDS}")
        k.e(f"s_cselect_b32 s{sRing}, 0, s{sRing}")

    k.e(f"s_mov_b32 s{sRing}, 0")
    L_loop = f"L_{kind}_cloop"
    if DEEP:
        k.e(f"s_mov_b32 s{sCnt}, {(NS - 2) // 2}")
        set_addr()
        t_mark(k, 0)
        k.e("s_barrier")
        t_mark(k, 1)
        for x in reads(0, 0) + reads(1, 1):
            k.e(x)
        ring_adv()

        def step(cur):
            nx = 2 - cur
            set_addr()
            k.e("s_waitcnt lgkmcnt(0)")
            k.e("s_barrier")
            interleave(mfmas(cur) + mfmas(cur + 1), reads(nx, 0) + reads(nx + 1, 1))
            ring_adv()
        k.label(L_loop)
        step(0)
        loop_touch()
        l = k.newlabel("rl")
        k.e(f"s_cmp_lg_u32 s{sCnt}, {cfg.get('RLC', 3)}")
        k.e(f"s_cbranch_scc1 {l}")
        for x in resload:
            k.e(x)
        k.label(l)
        step(2)
        loop_touch()
        k.e(f"s_sub_u32 s{sCnt}, s{sCnt}, 1")
        k.e(f"s_cmp_lg_u32 s{sCnt}, 0")
        k.e(f"s_cbranch_scc1 {L_loop}")
        step(0)
        for x in unpack:
            k.e(x)
        k.e("s_waitcnt lgkmcnt(0)")
        interleave(mfmas(2) + mfmas(3), [])
    else:
        k.e(f"s_mov_b32 s{sCnt}, {NS - 1}")
        set_addr()
        t_mark(k, 0)
        k.e("s_barrier")
        t_mark(k, 1)
        for x in reads(0, 0):
            k.e(x)
        k.label(L_loop)
        k.e("s_waitcnt lgkmcnt(0)")
        interleave(mfmas(0), reads(1, 1))
        loop_touch()
        ring_adv()
        k.e("s_waitcnt lgkmcnt(0)")
        k.e("s_barrier")
        set_addr()
        interleave(mfmas(1), reads(0, 0))
        k.e(f"s_sub_u32 s{sCnt}, s{sCnt}, 1")
        k.e(f"s_cmp_lg_u32 s{sCnt}, 0")
        k.e(f"s_cbranch_scc1 {L_loop}")
        if kind in ("wo", "w2"):
            for x in unpack:
                k.e(x)
        k.e("s_waitcnt lgkmcnt(0)")
        interleave(mfmas(0), reads(1, 1))
        k.e("s_waitcnt lgkmcnt(0)")
        interleave(mfmas(1), [])
    t_mark(k, 2)

    E = FR
    if kind in ("qkv", "w1"):
        k.e("s_barrier")
    if kind == "qkv":
        qs = (32 ** -0.5) * math.log2(math.e)
        vAB = E
        vABq = E + 8
        vCS = E + 16
        vVS = E + 32
        vCV = E + 64
        vPK = E + 68
        vTP = E + 76
        vAD, vST = vT0, vT1
        VEND = max(VEND, vTP + 4)
        k.e(f"s_lshl_b32 s{sT0}, s{sWM}, 9")
        k.e(f"v_lshl_add_u32 v{vAD}, v{vC}, 3, s{sT0}")
        for tb in range(4):
            k.e(f"ds_read_b64 {vr(vAB + 2 * tb, 2)}, v{vAD} offset:{T_AB + tb * 128}")
        k.e(f"v_lshl_add_u32 v{vAD}, v{vG}, 5, s{sT0}")
        for tb in range(4):
            for hh in range(2):
                k.e(f"ds_read_b128 {vr(vVS + 8 * tb + 4 * hh, 4)}, v{vAD} offset:{T_AB + tb * 128 + hh * 16}")
        k.e(f"s_lshl_b32 s{sT0}, s{sWN}, 7")
        k.e(f"v_lshl_add_u32 v{vAD}, v{vG}, 4, s{sT0}")
        for seg in range(2):
            for b in range(2):
                k.e(f"ds_read_b128 {vr(vCS + (seg * 2 + b) * 4, 4)}, v{vAD} offset:{T_CS + seg * 256 + b * 64}")
        k.e(f"v_lshl_add_u32 v{vAD}, v{vC}, 2, s{sT0}")
        for e_ in range(2):
            k.e(f"ds_read_b32 v{vCV + e_}, v{vAD} offset:{T_CS + 512 + e_ * 64}")
        k.e(f"v_and_b32 v{vST}, 3, v{vC}")
        k.e(f"v_bfe_u32 v{vT2}, v{vC}, 2, 1")
        k.e(f"v_lshl_or_b32 v{vST}, v{vT2}, 3, v{vST}")
        k.e(f"v_bfe_u32 v{vT2}, v{vC}, 3, 1")
        k.e(f"v_lshl_or_b32 v{vST}, v{vT2}, 2, v{vST}")
        k.e(f"v_lshlrev_b32 v{vST}, 4, v{vST}")
        k.e(f"v_and_b32 v{vT2}, 1, v{vG}")
        k.e(f"v_lshl_or_b32 v{vST}, v{vT2}, 10, v{vST}")
        k.e(f"v_lshrrev_b32 v{vT2}, 1, v{vG}")
        k.e(f"v_lshl_or_b32 v{vST}, v{vT2}, 9, v{vST}")
        k.e(f"s_lshl_b32 s{sT0}, s{sNT}, 1")
        k.e(f"s_add_u32 s{sT0}, s{sT0}, s{sWN}")
        k.e(f"s_lshl_b32 s{sT0}, s{sT0}, 6")
        k.e(f"s_lshl_b32 s{sT1}, s{sMT}, 2")
        k.e(f"s_add_u32 s{sT0}, s{sT0}, s{sT1}")
        k.e(f"s_lshl_b32 s{sT1}, s{sWM}, 1")
        k.e(f"s_add_u32 s{sT0}, s{sT0}, s{sT1}")
        k.e(f"s_lshl_b32 s{sT0}, s{sT0}, 11")
        sQ, sK_, sV = sKx, sKw, sRx
        k.e(f"s_add_u32 s{sQ}, s{sT0}, {WS_QF}")
        k.e(f"s_add_u32 s{sK_}, s{sT0}, {WS_KF}")
        k.e(f"s_add_u32 s{sV}, s{sT0}, {WS_VF}")
        k.e(f"s_mov_b32 s{sT1}, {f32(qs)}")
        k.e("s_waitcnt lgkmcnt(0)")
        for i in range(8):
            k.e(f"v_mul_f32 v{vABq + i}, s{sT1}, v{vAB + i}")
        pk = 0
        for seg in range(2):
            ab = vABq if seg == 0 else vAB
            for tb in range(4):
                P4 = vPK + 4 * (pk & 1)
                pk += 1
                for b in range(2):
                    a = acc(tb, seg * 2 + b)
                    for h in range(2):
                        k.e(f"v_pk_mul_f32 {vr(vTP + 2*h, 2)}, {vr(ab + 2*tb, 2)}, {vr(vCS + (seg*2+b)*4 + 2*h, 2)} op_sel:[1,0] op_sel_hi:[1,1]")
                    for h in range(2):
                        k.e(f"v_pk_fma_f32 {vr(a + 2*h, 2)}, {vr(a + 2*h, 2)}, {vr(ab + 2*tb, 2)}, {vr(vTP + 2*h, 2)} op_sel:[0,0,0] op_sel_hi:[1,0,1]")
                    k.e(f"v_cvt_pk_bf16_f32 v{P4 + 2*b}, v{a}, v{a+1}")
                    k.e(f"v_cvt_pk_bf16_f32 v{P4 + 2*b + 1}, v{a+2}, v{a+3}")
                k.e("s_nop 1")
                k.e(f"v_permlane16_swap_b32 v{P4}, v{P4+2}")
                k.e(f"v_permlane16_swap_b32 v{P4+1}, v{P4+3}")
                k.e(f"buffer_store_dwordx4 {vr(P4, 4)}, v{vST}, s[{SRD_O}:{SRD_O+3}], s{sQ if seg == 0 else sK_} offen offset:{(tb >> 1) * 2048 + (tb & 1) * 256}{STFLAG}")
        for tp in range(2):
            for e_ in range(2):
                P4 = vPK + 4 * (pk & 1)
                pk += 1
                for t2 in range(2):
                    tb = tp * 2 + t2
                    a = acc(tb, 4 + e_)
                    for q in range(4):
                        k.e(f"v_mul_f32 v{vT2}, v{vVS + 8*tb + 2*q + 1}, v{vCV + e_}")
                        k.e(f"v_fma_f32 v{a+q}, v{a+q}, v{vVS + 8*tb + 2*q}, v{vT2}")
                    k.e(f"v_cvt_pk_bf16_f32 v{P4 + 2*t2}, v{a}, v{a+1}")
                    k.e(f"v_cvt_pk_bf16_f32 v{P4 + 2*t2 + 1}, v{a+2}, v{a+3}")
                k.e("s_nop 1")
                k.e(f"v_permlane16_swap_b32 v{P4}, v{P4+2}")
                k.e(f"v_permlane16_swap_b32 v{P4+1}, v{P4+3}")
                k.e(f"buffer_store_dwordx4 {vr(P4, 4)}, v{vST}, s[{SRD_O}:{SRD_O+3}], s{sV} offen offset:{tp * 2048 + e_ * 256}{STFLAG}")
    elif kind == "w1":
        vAB = E
        vCS = E + 8
        vB1 = E + 36
        vPK = E + 64
        vG1, vG2 = E + 72, E + 76
        VEND = max(VEND, E + 80)
        vAD, vST, vSTH = vT0, vT1, vT3
        k.e(f"s_lshl_b32 s{sT0}, s{sWM}, 9")
        k.e(f"v_lshl_add_u32 v{vAD}, v{vC}, 3, s{sT0}")
        for tb in range(4):
            k.e(f"ds_read_b64 {vr(vAB + 2 * tb, 2)}, v{vAD} offset:{T_AB + tb * 128}")
        k.e(f"s_lshl_b32 s{sT0}, s{sWN}, 7")
        k.e(f"v_lshl_add_u32 v{vAD}, v{vG}, 4, s{sT0}")
        for seg in range(3):
            for b in range(2):
                k.e(f"ds_read_b128 {vr(vCS + (seg * 2 + b) * 4, 4)}, v{vAD} offset:{T_CS + seg * 256 + b * 64}")
                k.e(f"ds_read_b128 {vr(vB1 + (seg * 2 + b) * 4, 4)}, v{vAD} offset:{T_B1 + seg * 256 + b * 64}")
        k.e(f"s_lshl_b32 s{sT0}, s{sWN}, 6")
        k.e(f"v_lshl_add_u32 v{vAD}, v{vG}, 4, s{sT0}")
        k.e(f"ds_read_b128 {vr(vCS + 24, 4)}, v{vAD} offset:{T_CS + 768}")
        k.e(f"ds_read_b128 {vr(vB1 + 24, 4)}, v{vAD} offset:{T_B1 + 768}")
        k.e(f"s_lshl_b32 s{sT0}, s{sMT}, 7")
        k.e(f"s_lshl_b32 s{sT1}, s{sWM}, 6")
        k.e(f"s_add_u32 s{sT0}, s{sT0}, s{sT1}")
        k.e(f"v_add_u32 v{vT2}, s{sT0}, v{vC}")
        k.e(f"s_mov_b32 s{sT1}, {F * 2}")
        k.e(f"v_mul_lo_u32 v{vST}, v{vT2}, s{sT1}")
        k.e(f"v_and_b32 v{vG1}, 1, v{vG}")
        k.e(f"v_lshrrev_b32 v{vG2}, 1, v{vG}")
        k.e(f"v_mul_u32_u24 v{vSTH}, {16 * F * 2}, v{vG1}")
        k.e(f"v_add_u32 v{vSTH}, v{vSTH}, v{vST}")
        k.e(f"v_lshl_add_u32 v{vSTH}, v{vG2}, 4, v{vSTH}")
        k.e(f"s_lshl_b32 s{sT0}, s{sNT}, 6")
        k.e(f"s_lshl_b32 s{sT1}, s{sWN}, 5")
        k.e(f"s_add_u32 s{sT0}, s{sT0}, s{sT1}")
        k.e(f"s_add_u32 s{sT0}, s{sT0}, {3072 * 2}")
        k.e(f"v_add_u32 v{vSTH}, s{sT0}, v{vSTH}")
        k.e(f"v_lshl_add_u32 v{vST}, v{vG1}, 5, v{vST}")
        k.e(f"v_lshl_add_u32 v{vST}, v{vG2}, 4, v{vST}")
        k.e(f"s_mul_i32 s{sT0}, s{sNT}, 384")
        k.e(f"s_lshl_b32 s{sT1}, s{sWN}, 6")
        k.e(f"s_add_u32 s{sT0}, s{sT0}, s{sT1}")
        k.e(f"v_add_u32 v{vST}, s{sT0}, v{vST}")
        c0 = math.sqrt(2.0 / math.pi)
        kk1 = -2.0 * c0 * math.log2(math.e)
        kk3 = kk1 * 0.044715
        sK1, sK3 = sKx, sKw
        k.e(f"s_mov_b32 s{sK1}, {f32(kk1)}")
        k.e(f"s_mov_b32 s{sK3}, {f32(kk3)}")
        vKC, vONE = E + 80, E + 82
        vGA = E + 84
        VEND = max(VEND, E + 92)
        k.e(f"v_mov_b32 v{vKC}, s{sK3}")
        k.e(f"v_mov_b32 v{vKC+1}, s{sK1}")
        k.e(f"v_mov_b32 v{vONE}, 1.0")
        k.e(f"v_mov_b32 v{vONE+1}, 1.0")
        k.e("s_waitcnt lgkmcnt(0)")

        def gelu8(items, P4):
            prs = []
            for i, (a_, tb, blk) in enumerate(items):
                for h in range(2):
                    prs.append((a_ + 2 * h, vAB + 2 * tb, vCS + blk * 4 + 2 * h, vB1 + blk * 4 + 2 * h, vGA + (i * 2 + h) * 2))
            for (u, ab, cs, b1, g) in prs:
                k.e(f"v_pk_fma_f32 {vr(g, 2)}, {vr(ab, 2)}, {vr(cs, 2)}, {vr(b1, 2)} op_sel:[1,0,0] op_sel_hi:[1,1,1]")
            for (u, ab, cs, b1, g) in prs:
                k.e(f"v_pk_fma_f32 {vr(u, 2)}, {vr(u, 2)}, {vr(ab, 2)}, {vr(g, 2)} op_sel:[0,0,0] op_sel_hi:[1,0,1]")
            for (u, ab, cs, b1, g) in prs:
                k.e(f"v_pk_mul_f32 {vr(g, 2)}, {vr(u, 2)}, {vr(u, 2)}")
            for (u, ab, cs, b1, g) in prs:
                k.e(f"v_pk_fma_f32 {vr(g, 2)}, {vr(g, 2)}, {vr(vKC, 2)}, {vr(vKC, 2)} op_sel:[0,0,1] op_sel_hi:[1,0,1]")
            for (u, ab, cs, b1, g) in prs:
                k.e(f"v_pk_mul_f32 {vr(g, 2)}, {vr(g, 2)}, {vr(u, 2)}")
            for (u, ab, cs, b1, g) in prs:
                k.e(f"v_exp_f32 v{g}, v{g}")
                k.e(f"v_exp_f32 v{g+1}, v{g+1}")
            for (u, ab, cs, b1, g) in prs:
                k.e(f"v_pk_add_f32 {vr(g, 2)}, {vr(g, 2)}, {vr(vONE, 2)}")
            for (u, ab, cs, b1, g) in prs:
                k.e(f"v_rcp_f32 v{g}, v{g}")
                k.e(f"v_rcp_f32 v{g+1}, v{g+1}")
            for (u, ab, cs, b1, g) in prs:
                k.e(f"v_pk_mul_f32 {vr(u, 2)}, {vr(u, 2)}, {vr(g, 2)}")
            for i, (u, ab, cs, b1, g) in enumerate(prs):
                k.e(f"v_cvt_pk_bf16_f32 v{P4 + i}, v{u}, v{u+1}")
            k.e("s_nop 1")
            k.e(f"v_permlane16_swap_b32 v{P4}, v{P4+2}")
            k.e(f"v_permlane16_swap_b32 v{P4+1}, v{P4+3}")

        pk = 0
        for tb in range(4):
            k.e(f"s_mov_b32 s{sT1}, {tb * 16 * F * 2}")
            for seg in range(3):
                P4 = vPK + 4 * (pk & 1)
                pk += 1
                gelu8([(acc(tb, seg * 2 + b), tb, seg * 2 + b) for b in range(2)], P4)
                k.e(f"buffer_store_dwordx4 {vr(P4, 4)}, v{vST}, s[{SRD_O}:{SRD_O+3}], s{sT1} offen offset:{seg * 128}{STFLAG}")
        for tp in range(2):
            k.e(f"s_mov_b32 s{sT1}, {tp * 32 * F * 2}")
            P4 = vPK + 4 * (pk & 1)
            pk += 1
            gelu8([(acc(tp * 2 + t2, 6), tp * 2 + t2, 6) for t2 in range(2)], P4)
            k.e(f"buffer_store_dwordx4 {vr(P4, 4)}, v{vSTH}, s[{SRD_O}:{SRD_O+3}], s{sT1} offen{STFLAG}")
    else:
        vPK = E
        vM = E + 16
        vQ = E + 20
        vU = E + 24
        vW_ = E + 32
        VEND = max(VEND, E + 40)
        vST = vT1
        k.e("s_nop 7")
        k.e(f"s_lshl_b32 s{sT0}, s{sMT}, 7")
        k.e(f"s_lshl_b32 s{sT1}, s{sWM}, 6")
        k.e(f"s_add_u32 s{sT0}, s{sT0}, s{sT1}")
        k.e(f"v_add_u32 v{vST}, s{sT0}, v{vC}")
        k.e(f"v_lshlrev_b32 v{vST}, 11, v{vST}")
        k.e(f"v_and_b32 v{vT2}, 1, v{vG}")
        k.e(f"v_lshl_add_u32 v{vST}, v{vT2}, 5, v{vST}")
        k.e(f"v_lshrrev_b32 v{vT2}, 1, v{vG}")
        k.e(f"v_lshl_add_u32 v{vST}, v{vT2}, 4, v{vST}")
        k.e(f"s_lshl_b32 s{sT0}, s{sNT}, 7")
        k.e(f"s_lshl_b32 s{sT1}, s{sWN}, 6")
        k.e(f"s_add_u32 s{sT0}, s{sT0}, s{sT1}")
        k.e(f"v_add_u32 v{vST}, s{sT0}, v{vST}")
        for tb in range(4):
            P4 = vPK + 4 * tb
            for b in range(2):
                a = acc(tb, b)
                for q in range(4):
                    k.e(f"v_add_f32 v{a+q}, v{a+q}, v{RF + (tb*2+b)*4 + q}")
                k.e(f"v_cvt_pk_bf16_f32 v{P4 + 2*b}, v{a}, v{a+1}")
                k.e(f"v_cvt_pk_bf16_f32 v{P4 + 2*b + 1}, v{a+2}, v{a+3}")
            for j in range(4):
                k.e(f"v_lshlrev_b32 v{vU + 2*j}, 16, v{P4 + j}")
                k.e(f"v_and_b32 v{vU + 2*j + 1}, 0xffff0000, v{P4 + j}")
            k.e(f"v_permlane16_swap_b32 v{P4}, v{P4+2}")
            k.e(f"v_permlane16_swap_b32 v{P4+1}, v{P4+3}")
            k.e(f"s_mov_b32 s{sT1}, {tb * 16 * 2048}")
            k.e(f"buffer_store_dwordx4 {vr(P4, 4)}, v{vST}, s[{SRD_O}:{SRD_O+3}], s{sT1} offen{STFLAG}")
            for j in range(4):
                k.e(f"v_add_f32 v{vW_ + j}, v{vU + 2*j}, v{vU + 2*j + 1}")
            k.e(f"v_add_f32 v{vW_}, v{vW_}, v{vW_+1}")
            k.e(f"v_add_f32 v{vW_+2}, v{vW_+2}, v{vW_+3}")
            k.e(f"v_add_f32 v{vW_}, v{vW_}, v{vW_+2}")
            k.e(f"v_mul_f32 v{vM + tb}, 0.125, v{vW_}")
            for j in range(8):
                k.e(f"v_sub_f32 v{vU + j}, v{vU + j}, v{vM + tb}")
            k.e(f"v_mul_f32 v{vQ + tb}, v{vU}, v{vU}")
            k.e(f"v_mul_f32 v{vW_}, v{vU+1}, v{vU+1}")
            for j in range(2, 8, 2):
                k.e(f"v_fmac_f32 v{vQ + tb}, v{vU + j}, v{vU + j}")
                k.e(f"v_fmac_f32 v{vW_}, v{vU + j + 1}, v{vU + j + 1}")
            k.e(f"v_add_f32 v{vQ + tb}, v{vQ + tb}, v{vW_}")

        def combine(ma, mb, qa, qb, n_each):
            k.e(f"v_sub_f32 v{vW_}, v{ma}, v{mb}")
            k.e(f"v_add_f32 v{ma}, v{ma}, v{mb}")
            k.e(f"v_add_f32 v{qa}, v{qa}, v{qb}")
            k.e(f"v_mul_f32 v{vW_+1}, {f32(n_each / 2.0)}, v{vW_}")
            k.e(f"v_mul_f32 v{ma}, 0.5, v{ma}")
            k.e(f"v_fmac_f32 v{qa}, v{vW_}, v{vW_+1}")

        k.e("s_nop 1")
        k.e(f"v_permlane16_swap_b32 v{vM}, v{vM+1}")
        k.e(f"v_permlane16_swap_b32 v{vQ}, v{vQ+1}")
        k.e(f"v_permlane16_swap_b32 v{vM+2}, v{vM+3}")
        k.e(f"v_permlane16_swap_b32 v{vQ+2}, v{vQ+3}")
        combine(vM, vM + 1, vQ, vQ + 1, 8)
        combine(vM + 2, vM + 3, vQ + 2, vQ + 3, 8)
        k.e("s_nop 1")
        k.e(f"v_permlane32_swap_b32 v{vM}, v{vM+2}")
        k.e(f"v_permlane32_swap_b32 v{vQ}, v{vQ+2}")
        combine(vM, vM + 2, vQ, vQ + 2, 16)
        k.e(f"v_mov_b32 v{vM+1}, v{vQ}")
        k.e(f"s_lshl_b32 s{sT0}, s{sWM}, 9")
        k.e(f"v_lshl_add_u32 v{vT2}, v0, 3, s{sT0}")
        L_w0 = f"L_{kind}_w0"
        k.e(f"s_cmp_eq_u32 s{sWN}, 0")
        k.e(f"s_cbranch_scc1 {L_w0}")
        k.e(f"ds_write_b64 v{vT2}, {vr(vM, 2)} offset:{T_ST}")
        k.e("s_waitcnt lgkmcnt(0)")
        k.e("s_barrier")
        t_end(k, slot_sgpr=sWave)
        k.e("s_endpgm")
        k.label(L_w0)
        k.e("s_barrier")
        k.e(f"ds_read_b64 {vr(vM+2, 2)}, v{vT2} offset:{T_ST}")
        k.e("s_waitcnt lgkmcnt(0)")
        combine(vM, vM + 2, vM + 1, vM + 3, 32)
        k.e(f"s_lshl_b32 s{sT0}, s{sMT}, 7")
        k.e(f"s_lshl_b32 s{sT1}, s{sWM}, 6")
        k.e(f"s_add_u32 s{sT0}, s{sT0}, s{sT1}")
        k.e(f"v_add_u32 v{vT2}, s{sT0}, v0")
        k.e(f"v_lshlrev_b32 v{vT2}, 7, v{vT2}")
        k.e(f"s_lshl_b32 s{sT0}, s{sNT}, 3")
        k.e(f"s_add_u32 s{sT0}, s{sT0}, {(WS_ST1 if kind == 'wo' else WS_ST0) - WS_ST0}")
        k.e(f"buffer_store_dwordx2 {vr(vM, 2)}, v{vT2}, s[{SRD_T}:{SRD_T+3}], s{sT0} offen")
    t_end(k, slot_sgpr=sWave)
    k.e("s_endpgm")

    k.label(L_loader)
    sLW = sWM
    k.e(f"s_sub_u32 s{sLW}, s{sWave}, 4")
    vXO = 8
    vWO = 12
    vHO = 20
    vSTt = 24
    vCSt = 56
    vB1t = 48
    vA_, vBm = 50, 51
    t0, t1, t2, t3 = 1, 2, 3, 4
    has_tab = kind in ("qkv", "w1")
    def table_loads():
        srds_tables()
        k.e(f"v_and_b32 v{t0}, 31, v0")
        k.e(f"s_lshl_b32 s{sT0}, s{sMT}, 7")
        k.e(f"s_lshl_b32 s{sT1}, s{sLW}, 5")
        k.e(f"s_add_u32 s{sT0}, s{sT0}, s{sT1}")
        k.e(f"v_add_u32 v{t0}, s{sT0}, v{t0}")
        k.e(f"v_lshlrev_b32 v{t0}, 7, v{t0}")
        k.e(f"v_lshrrev_b32 v{t1}, 5, v0")
        k.e(f"v_lshl_add_u32 v{t0}, v{t1}, 6, v{t0}")
        k.e(f"s_mov_b32 s{sT0}, {(WS_ST0 if kind == 'qkv' else WS_ST1) - WS_ST0}")
        for j in range(4):
            k.e(f"buffer_load_dwordx4 {vr(vSTt + 4*j, 4)}, v{t0}, s[{SRD_T}:{SRD_T+3}], s{sT0} offen offset:{16*j}")
        if kind == "qkv":
            k.e(f"s_min_u32 s{sT0}, s{sLW}, 2")
            k.e(f"s_lshl_b32 s{sT0}, s{sT0}, 10")
            k.e(f"s_lshl_b32 s{sT1}, s{sNT}, 6")
            k.e(f"s_add_u32 s{sT0}, s{sT0}, s{sT1}")
            k.e(f"v_add_u32 v{t1}, s{sT0}, v0")
            csb, csn = WS_CSQ - WS_ST0, 3072
        else:
            k.e(f"s_mul_i32 s{sT0}, s{sNT}, 192")
            k.e(f"s_lshl_b32 s{sT1}, s{sLW}, 6")
            k.e(f"s_add_u32 s{sT0}, s{sT0}, s{sT1}")
            k.e(f"s_lshl_b32 s{sT1}, s{sNT}, 5")
            k.e(f"s_add_u32 s{sT1}, s{sT1}, 3072")
            k.e(f"s_cmp_eq_u32 s{sLW}, 3")
            k.e(f"s_cselect_b32 s{sT0}, s{sT1}, s{sT0}")
            k.e(f"s_cselect_b32 s{sT1}, 31, 63")
            k.e(f"v_and_b32 v{t1}, s{sT1}, v0")
            k.e(f"v_add_u32 v{t1}, s{sT0}, v{t1}")
            csb, csn = WS_CS1 - WS_ST0, 3584
        k.e(f"v_lshlrev_b32 v{t2}, 2, v{t1}")
        for j in range(NKS):
            k.e(f"s_mov_b32 s{sT0}, {csb + j * csn * 4}")
            k.e(f"buffer_load_dword v{vCSt + j}, v{t2}, s[{SRD_T}:{SRD_T+3}], s{sT0} offen")
        if kind == "w1":
            k.e(f"v_lshlrev_b32 v{t2}, 1, v{t1}")
            k.e(f"buffer_load_ushort v{vB1t}, v{t2}, s[{SRD_B}:{SRD_B+3}], 0 offen")

    NTL = (5 + NKS if kind == "w1" else 4 + NKS) if has_tab else 0
    k.e(f"v_lshrrev_b32 v{t0}, 3, v0")
    k.e(f"v_lshrrev_b32 v{t1}, 1, v{t0}")
    k.e(f"s_and_b32 s{sT0}, s{sLW}, 1")
    k.e(f"s_lshl_b32 s{sT1}, s{sT0}, 2")
    k.e(f"v_add_u32 v{t1}, s{sT1}, v{t1}")
    k.e(f"v_and_b32 v{t2}, 7, v0")
    k.e(f"v_xor_b32 v{t1}, v{t1}, v{t2}")
    k.e(f"v_lshlrev_b32 v{t1}, 4, v{t1}")
    k.e(f"s_lshl_b32 s{sT1}, s{sLW}, 3")
    k.e(f"v_add_u32 v{t0}, s{sT1}, v{t0}")
    k.e(f"v_mul_u32_u24 v{t0}, {lda2}, v{t0}")
    k.e(f"v_add_u32 v{vXO}, v{t0}, v{t1}")
    for jj in range(1, 4):
        k.e(f"v_add_u32 v{vXO + jj}, {jj * 32 * lda2}, v{vXO}")
    k.e(f"v_lshrrev_b32 v{t0}, 5, v0")
    k.e(f"v_bfe_u32 v{t1}, v0, 2, 2")
    k.e(f"v_lshl_add_u32 v{t0}, v{t0}, 2, v{t1}")
    k.e(f"v_add_u32 v{t0}, s{sT1}, v{t0}")
    k.e(f"v_mul_u32_u24 v{t0}, {ldw2}, v{t0}")
    k.e(f"v_and_b32 v{t1}, 3, v0")
    k.e(f"s_lshl_b32 s{sT0}, s{sT0}, 1")
    k.e(f"v_xor_b32 v{t1}, s{sT0}, v{t1}")
    k.e(f"v_bfe_u32 v{t2}, v0, 4, 1")
    k.e(f"v_lshl_add_u32 v{t1}, v{t2}, 2, v{t1}")
    k.e(f"v_lshl_add_u32 v{t0}, v{t1}, 4, v{t0}")
    if kind == "qkv":
        k.e(f"s_lshl_b32 s{sT0}, s{sNT}, 7")
        segoff = [0, 2048, 4096]
    elif kind == "w1":
        k.e(f"s_mul_i32 s{sT0}, s{sNT}, 384")
        segoff = [0, 128, 256]
    else:
        k.e(f"s_lshl_b32 s{sT0}, s{sNT}, 7")
        segoff = [0]
    k.e(f"v_add_u32 v{t0}, s{sT0}, v{t0}")
    for uu in range(2):
        for seg in range(NSEG):
            k.e(f"v_add_u32 v{vWO + uu * NSEG + seg}, {uu * 32 * ldw2 + segoff[seg]}, v{t0}")
    if HALF:
        k.e(f"v_lshrrev_b32 v{t0}, 2, v0")
        k.e(f"s_lshl_b32 s{sT1}, s{sLW}, 4")
        k.e(f"v_add_u32 v{t0}, s{sT1}, v{t0}")
        k.e(f"v_mul_u32_u24 v{t0}, {ldw2}, v{t0}")
        k.e(f"v_lshrrev_b32 v{t1}, 5, v0")
        k.e(f"v_lshlrev_b32 v{t1}, 1, v{t1}")
        k.e(f"v_and_b32 v{t2}, 3, v0")
        k.e(f"v_xor_b32 v{t1}, v{t1}, v{t2}")
        k.e(f"v_lshl_add_u32 v{t0}, v{t1}, 4, v{t0}")
        k.e(f"s_lshl_b32 s{sT0}, s{sNT}, 6")
        k.e(f"s_add_u32 s{sT0}, s{sT0}, {3072 * 2}")
        k.e(f"v_add_u32 v{vHO}, s{sT0}, v{t0}")
    sLX, sLWb = 53, 54
    k.e(f"s_lshl_b32 s{sLX}, s{sLW}, 10")
    k.e(f"s_mul_i32 s{sLWb}, s{sLW}, {NSEG * 1024}")
    k.e(f"s_add_u32 s{sLWb}, s{sLWb}, {XB}")
    k.e(f"s_mov_b32 s{sRing}, 0")
    ROT = cfg.get("rot", 0)
    if ROT:
        if NSEG == 3:
            k.e(f"s_and_b32 s{sT0}, s{sMT}, 7")
            k.e(f"s_mul_i32 s{sT0}, s{sT0}, {ROT}")
        else:
            k.e(f"s_and_b32 s{sT0}, s{sMT}, 3")
            k.e(f"s_mul_i32 s{sT0}, s{sT0}, {2 * ROT}")
        k.e(f"s_mul_i32 s{sKx}, s{sT0}, {BK * 2}")
        k.e(f"s_mul_i32 s{sKw}, s{sT0}, {BK * ldw2}")
    else:
        k.e(f"s_mov_b32 s{sKx}, 0")
        k.e(f"s_mov_b32 s{sKw}, 0")

    def issue_stage():
        k.e(f"s_add_u32 s{sRx}, s{sRing}, s{sLX}")
        k.e(f"s_add_u32 s{sRw}, s{sRing}, s{sLWb}")
        seq = []
        for uu in range(2):
            for seg in range(NSEG):
                seq.append((sRw, (4 * uu * NSEG + seg) * 1024, vWO + uu * NSEG + seg, SRD_W, sKw))
        xs = [(sRx, jj * 4096, vXO + jj, SRD_A, sKx) for jj in range(4)]
        if HALF:
            seq.append((sRx, XB + 8 * NSEG * 1024, vHO, SRD_W, sKw))
        seq = xs[:2] + seq[:NSEG] + xs[2:] + seq[NSEG:]
        for (sb, imm, vo, srd, sk) in seq:
            k.e(f"s_add_u32 m0, s{sb}, {imm}")
            k.e("s_nop 0")
            if not no_dma:
                k.e(f"buffer_load_dwordx4 v{vo}, s[{srd}:{srd+3}], s{sk} offen lds")
        k.e(f"s_add_u32 s{sKx}, s{sKx}, {BK * 2}")
        k.e(f"s_add_u32 s{sKw}, s{sKw}, {BK * ldw2}")
        if ROT:
            k.e(f"s_cmp_eq_u32 s{sKx}, {K * 2}")
            k.e(f"s_cselect_b32 s{sKx}, 0, s{sKx}")
            k.e(f"s_cselect_b32 s{sKw}, 0, s{sKw}")
        k.e(f"s_add_u32 s{sRing}, s{sRing}, {STAGE}")
        k.e(f"s_cmp_eq_u32 s{sRing}, {LDS}")
        k.e(f"s_cselect_b32 s{sRing}, 0, s{sRing}")

    srds_loader()
    t_mark(k, 0)
    DEP = min(cfg.get("D", 2), S - 2)
    I0 = cfg.get("I0", 1)
    def I(s_):
        return min(NS - 1, max(I0, min(s_ + DEP, I0 + 2 * s_)))
    for s in range(I(0) + 1):
        issue_stage()
    t_mark(k, 1)
    def table_process():
        k.e("s_waitcnt vmcnt(0)")
        m = [vSTt + 2 * j for j in range(8)]
        q = [vSTt + 2 * j + 1 for j in range(8)]
        k.e(f"v_add_f32 v{t0}, v{m[0]}, v{m[1]}")
        k.e(f"v_add_f32 v{t1}, v{m[2]}, v{m[3]}")
        k.e(f"v_add_f32 v{t2}, v{m[4]}, v{m[5]}")
        k.e(f"v_add_f32 v{t3}, v{m[6]}, v{m[7]}")
        k.e(f"v_add_f32 v{t0}, v{t0}, v{t1}")
        k.e(f"v_add_f32 v{t2}, v{t2}, v{t3}")
        k.e(f"v_add_f32 v{t0}, v{t0}, v{t2}")
        k.e(f"v_mul_f32 v{t0}, 0.125, v{t0}")
        k.e(f"v_mov_b32 v{t1}, 0")
        for j in range(8):
            k.e(f"v_sub_f32 v{m[j]}, v{m[j]}, v{t0}")
            k.e(f"v_fmac_f32 v{t1}, v{m[j]}, v{m[j]}")
        k.e(f"v_mul_f32 v{t1}, 64.0, v{t1}" if False else f"v_mul_f32 v{t1}, {f32(64.0)}, v{t1}")
        for j in range(8):
            k.e(f"v_add_f32 v{t1}, v{t1}, v{q[j]}")
        k.e(f"v_mov_b32 v{t2}, v{t0}")
        k.e(f"v_mov_b32 v{t3}, v{t1}")
        k.e("s_nop 1")
        k.e(f"v_permlane32_swap_b32 v{t0}, v{t2}")
        k.e(f"v_permlane32_swap_b32 v{t1}, v{t3}")
        k.e(f"v_sub_f32 v5, v{t0}, v{t2}")
        k.e(f"v_add_f32 v{t0}, v{t0}, v{t2}")
        k.e(f"v_mul_f32 v{t0}, 0.5, v{t0}")
        k.e(f"v_add_f32 v{t1}, v{t1}, v{t3}")
        k.e(f"v_mul_f32 v6, {f32(256.0)}, v5")
        k.e(f"v_fmac_f32 v{t1}, v5, v6")
        k.e(f"v_mul_f32 v{t1}, {f32(1.0 / 1024)}, v{t1}")
        k.e(f"v_add_f32 v{t2}, {f32(EPS)}, v{t1}")
        k.e(f"v_rsq_f32 v{vA_}, v{t2}")
        k.e("s_nop 0")
        if kind == "w1":
            k.e(f"v_mul_f32 v{t2}, v{vA_}, v{vA_}")
            k.e(f"v_mul_f32 v{t2}, v{t2}, v{t1}")
            k.e(f"v_add_f32 v{t2}, {f32(EPS)}, v{t2}")
            k.e(f"v_rsq_f32 v{t2}, v{t2}")
            k.e("s_nop 0")
            k.e(f"v_mul_f32 v{vA_}, v{vA_}, v{t2}")
        k.e(f"v_mul_f32 v{vBm}, v{vA_}, v{t0}")
        k.e(f"v_sub_f32 v{vBm}, 0, v{vBm}")
        for st_ in (8, 4, 2, 1):
            for i_ in range(st_):
                k.e(f"v_add_f32 v{vCSt+i_}, v{vCSt+i_}, v{vCSt+i_+st_}")
        if kind == "w1":
            k.e(f"v_lshlrev_b32 v{vB1t}, 16, v{vB1t}")

    steady = [s_ for s_ in range(NS) if I(s_) == s_ + DEP and s_ + 1 < NS and I(s_ + 1) == I(s_) + 1]
    s_ = 0
    tl_done = False
    while s_ < NS:
        if steady and s_ == steady[0] and len(steady) > 2:
            assert steady == list(range(steady[0], steady[-1] + 1))
            k.e(f"s_mov_b32 s{sCnt}, {len(steady)}")
            L_ll = f"L_{kind}_lloop"
            k.label(L_ll)
            k.e(f"s_waitcnt vmcnt({P * DEP})")
            k.e("s_barrier")
            issue_stage()
            k.e(f"s_sub_u32 s{sCnt}, s{sCnt}, 1")
            k.e(f"s_cmp_lg_u32 s{sCnt}, 0")
            k.e(f"s_cbranch_scc1 {L_ll}")
            s_ = steady[-1] + 1
            continue
        if I(s_) == NS - 1 and not tl_done and has_tab:
            table_loads()
            tl_done = True
        k.e(f"s_waitcnt vmcnt({P * (I(s_) - s_) + (NTL if tl_done else 0)})")
        k.e("s_barrier")
        if s_ == 0:
            t_mark(k, 2)
        if s_ + 1 < NS:
            for _ in range(I(s_ + 1) - I(s_)):
                issue_stage()
            assert I(s_ + 1) <= s_ + S - 1
        s_ += 1
    if has_tab:
        table_process()
        k.e(f"v_and_b32 v{t0}, 31, v0")
        k.e(f"s_lshl_b32 s{sT0}, s{sLW}, 8")
        k.e(f"v_lshl_add_u32 v{t0}, v{t0}, 3, s{sT0}")
        k.e(f"ds_write_b64 v{t0}, {vr(vA_, 2)} offset:{T_AB}")
        k.e(f"v_lshl_add_u32 v{t0}, v0, 2, s{sT0}")
        k.e(f"ds_write_b32 v{t0}, v{vCSt} offset:{T_CS}")
        if kind == "w1":
            k.e(f"ds_write_b32 v{t0}, v{vB1t} offset:{T_B1}")
        k.e("s_waitcnt lgkmcnt(0)")
        k.e("s_barrier")
    if nxt and cfg.get("nextpf", False):
        nc = GEMM_CFG[nxt]
        make_srd(k, SRD_N, sNP, nrec=nc["K"] * nc["N"] * 2)
        next_w_prefetch(k, nxt, SRD_N, sLW, cfg.get("NXR", 4 if nxt != "w2" else 2), 5, 1, 2, 6, sT0, sT1, sCnt)
    if nxt and cfg.get("slowpf", True):
        nc = GEMM_CFG[nxt]
        make_srd(k, SRD_N, sNP, nrec=nc["K"] * nc["N"] * 2)
        slow_prefetch(k, nxt, SRD_N, sLW, 5, 1, 6, sT0, sT1)
    t_end(k, slot_sgpr=sWave)
    k.label(L_end)
    k.e("s_endpgm")
    return k.text(), max(VEND, 72), LDS


def gen_attn(opts=None):
    opts = opts or {}
    k = Kern("attn")
    L_end = "L_attn_end"
    sWS = 4
    sWo, sW2 = 32, 34
    SRD_Q, SRD_O, SRD_P, SRD_P2 = 8, 12, 36, 40
    sWave, sHead, sQB, sT0, sT1, sKoff, sVoff, sCnt, sMaxN, sKbase, sTry, sPf = range(16, 28)
    vL16 = 1
    vT0, vT1, vT2, vT3 = 2, 3, 4, 5
    vSEL = 8
    vQ = 12
    NSET = 4
    vK = 28
    vV = 60
    vS = 92
    vNM = 124
    vO = 156
    vL = 188
    vP = 196
    vM = 212
    vPFo, vPFd = 6, 7
    VEND = 216

    def Q(qt, t): return vQ + (qt * 2 + t) * 4
    def Kf(st, t): return vK + (st * 2 + t) * 4
    def Vf(st, u): return vV + (st * 2 + u) * 4
    def Sx(qt): return vS + qt * 16
    def NM(qt): return vNM + qt * 16
    def O(qt): return vO + qt * 16
    def L(qt): return vL + qt * 4
    def P(qt): return vP + qt * 8

    def loadK(st):
        r = [f"buffer_load_dwordx4 {vr(Kf(st, t), 4)}, v{vL16}, s[{SRD_Q}:{SRD_Q+3}], s{sKoff} offen offset:{t * 1024}" for t in range(2)]
        r.append(f"s_add_u32 s{sKoff}, s{sKoff}, 2048")
        return r

    def loadV(st):
        r = [f"buffer_load_dwordx4 {vr(Vf(st, u), 4)}, v{vL16}, s[{SRD_Q}:{SRD_Q+3}], s{sVoff} offen offset:{u * 1024}" for u in range(2)]
        r.append(f"s_add_u32 s{sVoff}, s{sVoff}, 2048")
        return r

    def touch():
        return [f"buffer_load_dword v{vPFd}, v{vPFo}, s[{SRD_P}:{SRD_P+3}], s{sPf} offen",
                f"s_add_u32 s{sPf}, s{sPf}, 1024"]

    def first_loads():
        return loadK(0) + loadV(0) + loadK(1)

    def second_loads():
        return loadV(1) + loadK(2) + loadV(2) + loadK(3)

    def QK(qt, st, c=None):
        return [f"v_mfma_f32_32x32x16_bf16 {vr(Sx(qt), 16)}, {vr(Kf(st, 0), 4)}, {vr(Q(qt, 0), 4)}, {c if c is not None else vr(NM(qt), 16)}",
                f"v_mfma_f32_32x32x16_bf16 {vr(Sx(qt), 16)}, {vr(Kf(st, 1), 4)}, {vr(Q(qt, 1), 4)}, {vr(Sx(qt), 16)}"]

    def PV(qt, st, u):
        return f"v_mfma_f32_32x32x16_bf16 {vr(O(qt), 16)}, {vr(Vf(st, u), 4)}, {vr(P(qt) + 4*u, 4)}, {vr(O(qt), 16)}"

    def LM(qt, u):
        return f"v_mfma_f32_16x16x32_bf16 {vr(L(qt), 4)}, {vr(vSEL, 4)}, {vr(P(qt) + 4*u, 4)}, {vr(L(qt), 4)}"

    def emit(lst):
        for x in lst:
            k.e(x)

    k.e("s_cmp_ge_u32 s2, 256")
    k.e(f"s_cbranch_scc1 {L_end}")
    t_start(k)
    k.e(f"s_load_dwordx2 s[{sWS}:{sWS+1}], s[0:1], {KA_WS}")
    k.e(f"s_load_dwordx2 s[{sWo}:{sWo+1}], s[0:1], {KA_WO}")
    k.e(f"s_load_dwordx2 s[{sW2}:{sW2+1}], s[0:1], {KA_W2}")
    k.e("v_lshrrev_b32 v1, 6, v0")
    k.e("v_and_b32 v0, 63, v0")
    k.e(f"v_readfirstlane_b32 s{sWave}, v1")
    k.e(f"v_lshlrev_b32 v{vL16}, 4, v0")
    k.e(f"v_cmp_gt_u32 vcc, {8 if opts.get('pf', True) else 0}, v0")
    k.e(f"v_lshlrev_b32 v{vT0}, 7, v0")
    k.e(f"v_mov_b32 v{vT1}, {BIGOFF}")
    k.e(f"v_cndmask_b32 v{vPFo}, v{vT1}, v{vT0}, vcc")
    k.e(f"s_and_b32 s{sT0}, s2, 7")
    k.e(f"s_lshl_b32 s{sHead}, s{sT0}, 2")
    k.e(f"s_lshr_b32 s{sT0}, s2, 6")
    k.e(f"s_add_u32 s{sHead}, s{sHead}, s{sT0}")
    k.e(f"s_lshr_b32 s{sQB}, s2, 3")
    k.e(f"s_and_b32 s{sQB}, s{sQB}, 7")
    k.e(f"s_and_b32 s{sT0}, s{sWave}, 3")
    k.e(f"s_lshl_b32 s{sT0}, s{sT0}, 1")
    k.e(f"s_lshl_b32 s{sQB}, s{sQB}, 3")
    k.e(f"s_add_u32 s{sQB}, s{sQB}, s{sT0}")
    k.e(f"s_lshl_b32 s{sT1}, s{sHead}, 6")
    k.e(f"s_add_u32 s{sT0}, s{sT1}, s{sQB}")
    k.e(f"s_lshl_b32 s{sMaxN}, s{sT0}, 11")
    k.e(f"s_lshr_b32 s{sT0}, s{sWave}, 2")
    k.e(f"s_lshl_b32 s{sT0}, s{sT0}, 5")
    k.e(f"s_add_u32 s{sT0}, s{sT0}, s{sT1}")
    k.e(f"s_lshl_b32 s{sKbase}, s{sT0}, 11")
    k.e(f"s_add_u32 s{sKbase}, s{sKbase}, {WS_KF}")
    k.e(f"s_mov_b32 s{sKoff}, s{sKbase}")
    k.e(f"s_add_u32 s{sVoff}, s{sKbase}, {WS_VF - WS_KF}")
    k.e("s_waitcnt lgkmcnt(0)")
    make_srd(k, SRD_Q, sWS, nrec=12 * MB + 16384)
    for qt in range(2):
        for t in range(2):
            k.e(f"buffer_load_dwordx4 {vr(Q(qt, t), 4)}, v{vL16}, s[{SRD_Q}:{SRD_Q+3}], s{sMaxN} offen offset:{qt * 2048 + t * 1024}")
    k.e(f"s_lshl_b32 s{sPf}, s2, 3")
    k.e(f"s_add_u32 s{sPf}, s{sPf}, s{sWave}")
    k.e(f"s_cmp_lt_u32 s{sPf}, 896")
    k.e(f"s_cselect_b32 s{SRD_P}, s{sW2}, s{sWo}")
    k.e(f"s_cselect_b32 s{SRD_P+1}, s{sW2+1}, s{sWo+1}")
    k.e(f"s_mov_b32 s{SRD_P+2}, {D * D * 2}")
    k.e(f"s_cselect_b32 s{SRD_P+2}, {F * D * 2}, s{SRD_P+2}")
    k.e(f"s_cselect_b32 s{sT0}, 0, 896")
    k.e(f"s_and_b32 s{SRD_P+1}, s{SRD_P+1}, 0xffff")
    k.e(f"s_mov_b32 s{SRD_P+3}, {SRD3}")
    k.e(f"s_sub_u32 s{sPf}, s{sPf}, s{sT0}")
    k.e(f"s_lshl_b32 s{sPf}, s{sPf}, 13")
    emit(first_loads())
    make_srd(k, SRD_O, sWS, off_imm=WS_O, nrec=4 * MB)
    make_srd(k, SRD_P2, sWo, nrec=D * D * 2)
    k.e(f"v_lshrrev_b32 v{vT0}, 4, v0")
    k.e(f"v_lshrrev_b32 v{vT1}, 2, v0")
    k.e(f"v_xor_b32 v{vT0}, v{vT0}, v{vT1}")
    k.e(f"v_and_b32 v{vT0}, 1, v{vT0}")
    k.e(f"v_cmp_eq_u32 vcc, 0, v{vT0}")
    k.e(f"v_mov_b32 v{vT1}, 0x3f803f80")
    k.e("s_nop 1")
    for j in range(4):
        k.e(f"v_cndmask_b32 v{vSEL + j}, 0, v{vT1}, vcc")
    k.e(f"s_mov_b32 s{sTry}, 0")
    k.e(f"v_mov_b32 v{vM}, 0xff800000")
    k.e(f"v_mov_b32 v{vM+1}, 0xff800000")

    def zero_state():
        for qt in range(2):
            for i in range(16):
                k.e(f"v_mov_b32 v{O(qt)+i}, 0")
            for i in range(4):
                k.e(f"v_mov_b32 v{L(qt)+i}, 0")
        for i in range(4):
            k.e(f"v_mov_b32 v{P(1)+4+i}, 0")
            k.e(f"v_mov_b32 v{Vf(NSET - 1, 1)+i}, 0")

    def tile_max():
        emit(QK(0, 0, "0") + QK(1, 0, "0"))
        k.e("s_nop 11")
        for i in range(0, 16, 2):
            for qt in range(2):
                k.e(f"v_max3_f32 v{vM+qt}, v{Sx(qt)+i}, v{Sx(qt)+i+1}, v{vM+qt}")

    zero_state()
    k.e("s_waitcnt vmcnt(4)")
    tile_max()
    L_main = "L_attn_main"
    k.label(L_main)
    for qt in range(2):
        k.e(f"v_mov_b32 v{vT0+qt}, v{vM+qt}")
    k.e("s_nop 1")
    for qt in range(2):
        k.e(f"v_permlane32_swap_b32 v{vM+qt}, v{vT0+qt}")
    for qt in range(2):
        k.e(f"v_max_f32 v{vM+qt}, v{vM+qt}, v{vT0+qt}")
    for qt in range(2):
        for i in range(16):
            k.e(f"v_sub_f32 v{NM(qt)+i}, 0, v{vM+qt}")
    k.e("s_nop 1")
    emit(QK(0, 0))
    emit(second_loads())
    k.e(f"s_mov_b32 s{sCnt}, {32 // NSET}")
    k.e("s_nop 3")
    t_mark(k, 0)

    def phase(qt, M, after):
        s = Sx(qt)
        p = P(qt)
        ex = [f"v_exp_f32 v{s+i}, v{s+i}" for i in range(16)]
        cv = [f"v_cvt_pk_bf16_f32 v{p+j}, v{s+2*j}, v{s+2*j+1}" for j in range(8)]
        groups = [[ex[0], ex[1]],
                  [ex[2], ex[3], cv[0], ex[4]],
                  [ex[5], cv[1], ex[6], ex[7]],
                  [cv[2], ex[8], cv[3], ex[9]],
                  [ex[10], cv[4], ex[11], ex[12]],
                  [cv[5], ex[13], ex[14], ex[15]],
                  [cv[6], cv[7]]]
        for i in range(7):
            emit(groups[i])
            if i < 6:
                emit(M[i])
                emit(after.get(i, []))

    L_loop = "L_attn_loop"
    k.label(L_loop)
    for st in range(NSET):
        pv = (st - 1) % NSET
        nx = (st + 1) % NSET
        qk = QK(1, st)
        phase(0, [[PV(1, pv, 1)], [LM(1, 1)], [qk[0]], [qk[1]], ["s_waitcnt vmcnt(15)", PV(0, st, 0)], [LM(0, 0)]],
              {0: loadV(pv), 1: (touch() if st == 0 else []), 3: loadK(st)})
        qk = QK(0, nx)
        tail = {}
        if st == NSET - 1:
            tail = {5: [f"s_sub_u32 s{sCnt}, s{sCnt}, 1", f"s_cmp_lg_u32 s{sCnt}, 0"]}
        phase(1, [[PV(0, st, 1)], [LM(0, 1)], [f"s_waitcnt vmcnt({12 if st == 3 else 13})", qk[0]], [qk[1]], [PV(1, st, 0)], [LM(1, 0)]], tail)
    k.e(f"s_cbranch_scc1 {L_loop}")
    k.e("s_nop 0")
    emit([PV(1, NSET - 1, 1), LM(1, 1)])
    t_mark(k, 1)
    k.e("s_nop 15")
    k.e(f"v_mov_b32 v{vT0}, {f32(2.0 ** 64)}")
    k.e(f"v_cmp_nle_f32 vcc, v{L(0)}, v{vT0}")
    k.e(f"v_cmp_nle_f32 s[28:29], v{L(1)}, v{vT0}")
    k.e("s_nop 1")
    k.e("s_or_b64 s[28:29], s[28:29], vcc")
    if opts.get("force_fallback"):
        k.e("s_mov_b64 s[28:29], -1")
    L_ok = "L_attn_ok"
    k.e("s_cmp_eq_u64 s[28:29], 0")
    k.e(f"s_cbranch_scc1 {L_ok}")
    k.e(f"s_cmp_lg_u32 s{sTry}, 0")
    k.e(f"s_cbranch_scc1 {L_ok}")
    k.e("s_waitcnt vmcnt(0)")
    k.e(f"s_mov_b32 s{sTry}, 1")
    k.e(f"s_mov_b32 s{sKoff}, s{sKbase}")
    k.e(f"s_mov_b32 s{sCnt}, 32")
    k.e(f"v_mov_b32 v{vM}, 0xff800000")
    k.e(f"v_mov_b32 v{vM+1}, 0xff800000")
    L_mx = "L_attn_maxloop"
    k.label(L_mx)
    emit(loadK(0))
    k.e("s_waitcnt vmcnt(0)")
    tile_max()
    k.e(f"s_sub_u32 s{sCnt}, s{sCnt}, 1")
    k.e(f"s_cmp_lg_u32 s{sCnt}, 0")
    k.e(f"s_cbranch_scc1 {L_mx}")
    k.e(f"s_mov_b32 s{sKoff}, s{sKbase}")
    k.e(f"s_add_u32 s{sVoff}, s{sKbase}, {WS_VF - WS_KF}")
    emit(first_loads())
    zero_state()
    k.e("s_waitcnt vmcnt(4)")
    k.e(f"s_branch {L_main}")
    k.label(L_ok)
    SLOT = 5 * 1024
    k.e(f"s_mul_i32 s{sT0}, s{sWave}, {SLOT}")
    k.e(f"v_add_u32 v{vT0}, s{sT0}, v{vL16}")
    k.e(f"s_xor_b32 s{sT1}, s{sWave}, 4")
    k.e(f"s_mul_i32 s{sT1}, s{sT1}, {SLOT}")
    k.e(f"v_add_u32 v{vT1}, s{sT1}, v{vL16}")
    L_kh1 = "L_attn_kh1"
    L_fin = "L_attn_fin"
    k.e(f"s_cmp_ge_u32 s{sWave}, 4")
    k.e(f"s_cbranch_scc1 {L_kh1}")
    R = vS
    for kh in range(2):
        if kh == 1:
            k.label(L_kh1)
        send, keep = 1 - kh, kh
        k.e(f"v_mov_b32 v{L(send)+1}, v{vM+send}")
        for g in range(4):
            k.e(f"ds_write_b128 v{vT0}, {vr(O(send) + 4*g, 4)} offset:{g * 1024}")
        k.e(f"ds_write_b128 v{vT0}, {vr(L(send), 4)} offset:4096")
        k.e("s_waitcnt lgkmcnt(0)")
        k.e("s_barrier")
        if opts.get("pf", True):
            if kh == 1:
                k.e(f"s_sub_u32 s{sPf}, s{sWave}, 4")
                slow_prefetch(k, "wo", SRD_P2, sPf, vT2, vT3, vK + 1, sT0, sT1)
        for g in (4, 0, 1, 2, 3):
            k.e(f"ds_read_b128 {vr(R + 4*g, 4)}, v{vT1} offset:{g * 1024}")
        k.e("s_waitcnt lgkmcnt(4)")
        mo, lo = R + 17, R + 16
        k.e(f"v_max_f32 v{vT2}, v{vM+keep}, v{mo}")
        k.e(f"v_sub_f32 v{vT3}, v{vM+keep}, v{vT2}")
        k.e(f"v_sub_f32 v{vT2}, v{mo}, v{vT2}")
        k.e(f"v_exp_f32 v{vT3}, v{vT3}")
        k.e(f"v_exp_f32 v{vT2}, v{vT2}")
        k.e("s_nop 0")
        k.e(f"v_mul_f32 v{R+18}, v{vT3}, v{L(keep)}")
        k.e(f"v_fmac_f32 v{R+18}, v{vT2}, v{lo}")
        k.e(f"v_rcp_f32 v{R+18}, v{R+18}")
        k.e("s_nop 0")
        k.e(f"v_mul_f32 v{vT3}, v{vT3}, v{R+18}")
        k.e(f"v_mul_f32 v{vT2}, v{vT2}, v{R+18}")
        k.e("s_waitcnt lgkmcnt(0)")
        for i in range(16):
            k.e(f"v_mul_f32 v{R+i}, v{R+i}, v{vT2}")
            k.e(f"v_fmac_f32 v{R+i}, v{O(keep)+i}, v{vT3}")
        for j in range(8):
            k.e(f"v_cvt_pk_bf16_f32 v{vP+j}, v{R+2*j}, v{R+2*j+1}")
        k.e(f"s_add_u32 s{sT0}, s{sQB}, {keep}")
        if kh == 0:
            k.e(f"s_branch {L_fin}")
    k.label(L_fin)
    k.e(f"v_and_b32 v{vT0}, 0x13, v0")
    k.e(f"v_bfe_u32 v{vT1}, v0, 2, 1")
    k.e(f"v_lshl_or_b32 v{vT0}, v{vT1}, 3, v{vT0}")
    k.e(f"v_bfe_u32 v{vT1}, v0, 3, 1")
    k.e(f"v_lshl_or_b32 v{vT0}, v{vT1}, 2, v{vT0}")
    k.e(f"v_lshlrev_b32 v{vT0}, 11, v{vT0}")
    k.e(f"v_lshrrev_b32 v{vT1}, 5, v0")
    k.e(f"v_lshl_or_b32 v{vT0}, v{vT1}, 4, v{vT0}")
    k.e(f"s_lshl_b32 s{sT0}, s{sT0}, 16")
    k.e(f"s_lshl_b32 s{sT1}, s{sHead}, 6")
    k.e(f"s_add_u32 s{sT0}, s{sT0}, s{sT1}")
    for a in range(2):
        k.e(f"buffer_store_dwordx4 {vr(vP + 4*a, 4)}, v{vT0}, s[{SRD_O}:{SRD_O+3}], s{sT0} offen offset:{a * 32}")
    t_end(k, slot_sgpr=sWave)
    k.label(L_end)
    k.e("s_endpgm")
    return k.text(), VEND, 8 * SLOT


PREP_WARM = False
NKS = 16


def gen_prep():
    k = Kern("prep")
    NQ, N1 = 6 * NKS, 7 * NKS
    NCS = NQ + N1
    NST = 64
    NWG = NCS + NST
    L_end = "L_prep_end"
    L_st = "L_prep_stats"
    L_fin = "L_prep_fin"
    k.e(f"s_cmp_ge_u32 s2, {NWG}")
    k.e(f"s_cbranch_scc1 {L_end}")
    t_start(k)
    k.e(f"s_load_dwordx2 s[4:5], s[0:1], {KA_X}")
    k.e(f"s_load_dwordx2 s[6:7], s[0:1], {KA_WQKV}")
    k.e(f"s_load_dwordx2 s[8:9], s[0:1], {KA_W1}")
    k.e(f"s_load_dwordx2 s[10:11], s[0:1], {KA_WS}")
    k.e(f"s_load_dwordx2 s[44:45], s[0:1], {KA_WO}")
    k.e(f"s_load_dwordx2 s[46:47], s[0:1], {KA_W2}")
    k.e("v_lshrrev_b32 v1, 6, v0")
    k.e("v_mov_b32 v2, v0")
    k.e("v_readfirstlane_b32 s40, v1")
    k.e("v_and_b32 v0, 63, v0")
    k.e("s_waitcnt lgkmcnt(0)")
    SRD_X, SRD_W, SRD_T, SRD_A, SRD_B, SRD_Q = 12, 16, 20, 48, 52, 56
    make_srd(k, SRD_X, 4, nrec=4 * MB)
    make_srd(k, SRD_T, 10, off_imm=WS_ST0, nrec=WS_END - WS_ST0)
    make_srd(k, SRD_A, 44, nrec=D * D * 2)
    make_srd(k, SRD_B, 46, nrec=F * D * 2)
    make_srd(k, SRD_Q, 6, nrec=D * 3 * D * 2)
    k.e(f"s_cmp_lt_u32 s2, {NQ}")
    k.e("s_cselect_b32 s16, s6, s8")
    k.e("s_cselect_b32 s17, s7, s9")
    k.e(f"s_mov_b32 s18, {1024 * 3584 * 2}")
    k.e(f"s_cselect_b32 s18, {1024 * 3072 * 2}, s18")
    k.e("s_and_b32 s17, s17, 0xffff")
    k.e(f"s_mov_b32 s19, {SRD3}")
    k.e(f"s_cmp_ge_u32 s2, {NCS}")
    k.e(f"s_cbranch_scc1 {L_st}")
    k.e(f"s_cmp_lt_u32 s2, {NQ}")
    k.e(f"s_cselect_b32 s24, 0, {NQ}")
    k.e(f"s_mov_b32 s25, {3584 * 2}")
    k.e(f"s_cselect_b32 s25, {3072 * 2}, s25")
    k.e(f"s_mov_b32 s26, {WS_CS1 - WS_ST0}")
    k.e(f"s_cselect_b32 s26, {WS_CSQ - WS_ST0}, s26")
    k.e("s_sub_u32 s24, s2, s24")
    k.e(f"s_and_b32 s27, s24, {NKS - 1}")
    k.e("s_lshr_b32 s24, s24, 4")
    k.e("s_lshl_b32 s28, s27, 6")
    k.e("s_lshl_b32 s29, s40, 4")
    k.e("s_add_u32 s28, s28, s29")
    k.e("s_mul_i32 s28, s28, s25")
    k.e("s_lshl_b32 s29, s24, 10")
    k.e("s_add_u32 s28, s28, s29")
    k.e("v_lshlrev_b32 v3, 4, v0")
    for i in range(16):
        k.e(f"buffer_load_dwordx4 {vr(16 + 4*i, 4)}, v3, s[{SRD_W}:{SRD_W+3}], s28 offen")
        k.e("s_add_u32 s28, s28, s25")

    def warm():
        if not PREP_WARM:
            k.e("v_mov_b32 v4, 0")
            k.e(f"buffer_load_dword v6, v4, s[{SRD_B}:{SRD_B+3}], 0 offen")
            k.e(f"buffer_load_dword v7, v4, s[{SRD_A}:{SRD_A+3}], 0 offen")
            return
        k.e("v_lshlrev_b32 v4, 7, v2")
        k.e("s_lshl_b32 s30, s2, 15")
        k.e(f"buffer_load_dword v6, v4, s[{SRD_B}:{SRD_B+3}], s30 offen")
        k.e(f"s_sub_u32 s30, s2, {NWG - 64}")
        k.e("s_lshl_b32 s30, s30, 15")
        k.e(f"buffer_load_dword v7, v4, s[{SRD_A}:{SRD_A+3}], s30 offen")
    warm()
    for j in range(8):
        k.e(f"v_mov_b32 v{8+j}, 0")
    for i in range(16):
        k.e(f"s_waitcnt vmcnt({17 - i})")
        for j in range(4):
            k.e(f"v_lshlrev_b32 v4, 16, v{16 + 4*i + j}")
            k.e(f"v_and_b32 v5, 0xffff0000, v{16 + 4*i + j}")
            k.e(f"v_add_f32 v{8 + 2*j}, v{8 + 2*j}, v4")
            k.e(f"v_add_f32 v{9 + 2*j}, v{9 + 2*j}, v5")
    k.e("v_lshlrev_b32 v4, 5, v2")
    k.e("ds_write_b128 v4, v[8:11]")
    k.e("ds_write_b128 v4, v[12:15] offset:16")
    k.e("s_waitcnt lgkmcnt(0)")
    k.e("s_barrier")
    k.e("v_lshlrev_b32 v4, 3, v2")
    for i in range(4):
        k.e(f"ds_read_b64 {vr(16 + 2*i, 2)}, v4 offset:{i * 2048}")
    k.e("s_waitcnt lgkmcnt(0)")
    for j in range(2):
        k.e(f"v_add_f32 v{16+j}, v{16+j}, v{18+j}")
        k.e(f"v_add_f32 v{20+j}, v{20+j}, v{22+j}")
        k.e(f"v_add_f32 v{16+j}, v{16+j}, v{20+j}")
    k.e("s_lshl_b32 s28, s25, 1")
    k.e("s_mul_i32 s28, s28, s27")
    k.e("s_add_u32 s28, s28, s26")
    k.e("s_lshl_b32 s29, s24, 11")
    k.e("s_add_u32 s28, s28, s29")
    k.e(f"buffer_store_dwordx2 v[16:17], v4, s[{SRD_T}:{SRD_T+3}], s28 offen")
    k.e(f"s_branch {L_fin}")
    k.label(L_st)
    k.e(f"s_sub_u32 s24, s2, {NCS}")
    k.e("s_lshl_b32 s28, s24, 16")
    k.e("v_lshlrev_b32 v1, 4, v2")
    for p in range(16):
        k.e(f"buffer_load_dwordx4 {vr(16 + 4*p, 4)}, v1, s[{SRD_X}:{SRD_X+3}], s28 offen")
        k.e("s_add_u32 s28, s28, 4096")
    warm()
    k.e("v_lshrrev_b32 v10, 3, v2")
    k.e("v_lshlrev_b32 v10, 3, v10")
    k.e("v_and_b32 v3, 7, v2")
    k.e("v_cmp_eq_u32 s[30:31], 0, v3")
    k.e("s_lshl_b32 s28, s24, 12")
    U = 80
    for p in range(16):
        k.e("s_waitcnt vmcnt(17)")
        src = 16 + 4 * p
        for j in range(4):
            k.e(f"v_lshlrev_b32 v{U + 2*j}, 16, v{src + j}")
            k.e(f"v_and_b32 v{U + 1 + 2*j}, 0xffff0000, v{src + j}")
        k.e(f"v_add_f32 v4, v{U}, v{U+1}")
        k.e(f"v_add_f32 v5, v{U+2}, v{U+3}")
        k.e(f"v_add_f32 v11, v{U+4}, v{U+5}")
        k.e(f"v_add_f32 v12, v{U+6}, v{U+7}")
        k.e("v_add_f32 v4, v4, v5")
        k.e("v_add_f32 v11, v11, v12")
        k.e("v_add_f32 v4, v4, v11")

        def red8(r):
            k.e("s_nop 1")
            k.e(f"v_add_f32_dpp v{r}, v{r}, v{r} quad_perm:[1,0,3,2] row_mask:0xf bank_mask:0xf")
            k.e("s_nop 1")
            k.e(f"v_add_f32_dpp v{r}, v{r}, v{r} quad_perm:[2,3,0,1] row_mask:0xf bank_mask:0xf")
            k.e("s_nop 1")
            k.e(f"v_add_f32_dpp v{r}, v{r}, v{r} row_half_mirror row_mask:0xf bank_mask:0xf")
        red8(4)
        k.e(f"v_mul_f32 v8, {f32(1.0 / 64)}, v4")
        k.e("v_mov_b32 v9, 0")
        for j in range(8):
            k.e(f"v_sub_f32 v{U+j}, v{U+j}, v8")
            k.e(f"v_fmac_f32 v9, v{U+j}, v{U+j}")
        red8(9)
        k.e("s_mov_b64 exec, s[30:31]")
        k.e(f"buffer_store_dwordx2 v[8:9], v10, s[{SRD_T}:{SRD_T+3}], s28 offen offset:{p * 256}")
        k.e("s_mov_b64 exec, -1")
        k.e("s_nop 0")
    k.label(L_fin)
    k.e("s_cmp_ge_u32 s2, 256")
    k.e("s_cbranch_scc1 L_prep_nsp")
    slow_prefetch(k, "qkv", SRD_Q, 40, 13, 14, 15, 28, 29)
    k.label("L_prep_nsp")
    t_end(k, slot_sgpr=40)
    k.label(L_end)
    k.e("s_endpgm")
    return k.text(), 88, 8192, NWG


def build(opts=None, launches=None):
    opts = opts or {}
    code = []
    descs = []
    info = {}
    t, v, lds, grid = gen_prep()
    code.append(header("prep_kernel") + t)
    descs.append(desc("prep_kernel", v))
    info["prep_kernel"] = (grid, 256, lds)
    for kind in ("qkv", "wo", "w1", "w2"):
        t, v, lds = gen_gemm(kind, opts.get(kind))
        if kind in ("qkv", "wo"):
            for sfx, ka in (("a", KA_X), ("b", KA_OUT)):
                nm = f"{kind}_{sfx}_kernel"
                code.append(header(nm) + f"    s_load_dwordx2 s[4:5], s[0:1], {ka}\n    s_branch {kind}_body\n")
                descs.append(desc(nm, v))
                info[nm] = (256, 512, lds)
            code.append(".p2align 8\n" + t)
        else:
            nm = f"{kind}_kernel"
            code.append(header(nm) + t)
            descs.append(desc(nm, v))
            info[nm] = (256, 512, lds)
    t, v, lds = gen_attn(opts.get("attn"))
    code.append(header("attn_kernel") + t)
    descs.append(desc("attn_kernel", v))
    info["attn_kernel"] = (256, 512, lds)
    if launches is None:
        launches = ["prep_kernel", "qkv_a_kernel", "attn_kernel", "wo_a_kernel", "w1_kernel", "w2_kernel",
                    "qkv_b_kernel", "attn_kernel", "wo_b_kernel", "w1_kernel", "w2_kernel"]
    hdr = "; generated by work/gen.py -- LN-folded GEMMs (LDS-DMA ring, loader/compute waves) + flash attention\n"
    for l in launches:
        g, b, lds = info[l]
        hdr += f"; @launch kernel={l} grid=({g},1,1) block=({b},1,1) lds={lds}\n"
    out = hdr + '.amdgcn_target "amdgcn-amd-amdhsa--gfx950"\n.text\n' + "".join(code)
    out += '.section .rodata,"a"\n' + "".join(descs)
    return out


if __name__ == "__main__":
    path = sys.argv[1] if len(sys.argv) > 1 else f"cdna_kernels/{NAME}.s"
    if len(sys.argv) > 2 and sys.argv[2] == "timing":
        TIMING = True
    opts = {}
    if len(sys.argv) > 3:
        import json
        o = json.loads(sys.argv[3])
        if "all" in o:
            opts = {kk: dict(o["all"]) for kk in ("qkv", "wo", "w1", "w2")}
        for kk, vv in o.items():
            if kk != "all":
                opts.setdefault(kk, {}).update(vv)
    open(path, "w").write(build(opts))
    print("wrote", path)
```
